```python
import torch

def _softmax(x, axis=-1):
    return torch.softmax(x, dim=axis)

def _gelu(x):
    return torch.nn.functional.gelu(x, approximate='tanh')

def _silu(x):
    return torch.nn.functional.silu(x)

def _sigmoid(x):
    return torch.sigmoid(x)

def _layernorm(x, axis=-1, eps=1e-05):
    m = x.mean(dim=axis, keepdim=True)
    v = x.var(dim=axis, keepdim=True, unbiased=False)
    return (x - m) / torch.sqrt(v + eps)

def _scatter_add(tgt, idx, src, axis=0):
    return tgt.clone().index_add_(axis, idx, src)

def _segment_sum(src, seg, n):
    out = torch.zeros((n,) + src.shape[1:], dtype=src.dtype)
    return out.index_add_(0, seg, src)

def _pad(x, pw):
    flat = tuple((v for pair in reversed(pw) for v in pair))
    return torch.nn.functional.pad(x, flat)
kernel_name = 'recurrent_scan__memory_aug_recurrent_mem_tr__dense_activation_mish__prompt'

def setup_inputs():

    _w = lambda a: (lambda t: t.to(torch.bfloat16) if t.is_floating_point() else t)(torch.as_tensor(a))

    def _A_setup():
        B, S, Dm = (1, 2048, 640)
        H, Dh = (32, 128)
        M, seg = (8, 32)
        seg = min(seg, S)
        S = S // seg * seg
        return {'x': _w((lambda *s: torch.randn(*s, dtype=torch.bfloat16) * 0.05)(B, S, Dm)), 'mem0': _w((lambda *s: torch.randn(*s, dtype=torch.bfloat16) * 0.8)(B, M, Dm)), 'Wq': _w((lambda *s: torch.randn(*s, dtype=torch.bfloat16) * 0.8)(Dm, H, Dh) * Dm ** (-0.5)), 'Wk': _w((lambda *s: torch.randn(*s, dtype=torch.bfloat16) * 0.8)(Dm, H, Dh) * Dm ** (-0.5)), 'Wv': _w((lambda *s: torch.randn(*s, dtype=torch.bfloat16) * 0.8)(Dm, H, Dh) * Dm ** (-0.5)), 'Wo': _w((lambda *s: torch.randn(*s, dtype=torch.bfloat16) * 0.8)(H, Dh, Dm) * (H * Dh) ** (-0.5)), 'seg_len': seg}
    _A_in = _A_setup()

    def _B_setup():
        B, S, D, F = (1, 2048, 640, 1728)
        return {'x': _w((lambda *s: torch.randn(*s, dtype=torch.bfloat16) * 0.05)(B, S, D)), 'w1': _w((lambda *s: torch.randn(*s, dtype=torch.bfloat16) * 0.8)(D, F) * D ** (-0.5)), 'b1': _w((lambda *s: torch.randn(*s, dtype=torch.bfloat16) * 0.4)(F)), 'w2': _w((lambda *s: torch.randn(*s, dtype=torch.bfloat16) * 0.2)(F, D) * F ** (-0.5))}
    _B_in = _B_setup()
    return {'A_x': _A_in['x'], 'A_mem0': _A_in['mem0'], 'A_Wq': _A_in['Wq'], 'A_Wk': _A_in['Wk'], 'A_Wv': _A_in['Wv'], 'A_Wo': _A_in['Wo'], 'A_seg_len': _A_in['seg_len'], 'B_x': _B_in['x'], 'B_w1': _B_in['w1'], 'B_b1': _B_in['b1'], 'B_w2': _B_in['w2']}

def reference(A_x, A_mem0, A_Wq, A_Wk, A_Wv, A_Wo, A_seg_len, B_x, B_w1, B_b1, B_w2):

    def _A_ref(x, mem0, Wq, Wk, Wv, Wo, seg_len):
        B, S, Dm = x.shape
        H, Dh = (Wq.shape[1], Wq.shape[2])
        M = mem0.shape[1]
        scale = Dh ** (-0.5)
        n_seg = S // seg_len
        L = M + seg_len
        idx = torch.arange(L)
        mask = (idx[:, None] < M) | (idx[:, None] >= idx[None, :])
        mem = mem0
        outs = []
        for s in range(n_seg):
            xs = x[:, s * seg_len:(s + 1) * seg_len, :].clone()
            h = torch.concatenate([mem, xs], axis=1)
            q = torch.einsum('btd,dhe->bhte', h, Wq)
            k = torch.einsum('btd,dhe->bhte', h, Wk)
            v = torch.einsum('btd,dhe->bhte', h, Wv)
            scores = torch.einsum('bhqe,bhke->bhqk', q, k) * scale
            scores = torch.where(mask[None, None], scores, -1000000000.0)
            p = _softmax(scores, axis=-1)
            o = torch.einsum('bhqk,bhke->bhqe', p, v)
            o = torch.einsum('bhte,hed->btd', o, Wo)
            mem = o[:, :M, :].clone()
            outs.append(o[:, M:, :])
        return torch.concatenate(outs, axis=1)

    def _B_ref(x, w1, b1, w2):
        h = torch.einsum('bsd,df->bsf', x, w1) + b1
        sp = torch.log1p(torch.exp(-torch.abs(h))) + torch.where(h > 0, h, torch.zeros_like(h))
        act = h * torch.tanh(sp)
        return torch.einsum('bsf,fd->bsd', act, w2)
    x = A_x
    xn = _layernorm(x, axis=-1)
    s = _A_ref(xn, A_mem0, A_Wq, A_Wk, A_Wv, A_Wo, A_seg_len)
    g = _silu(_B_ref(xn, B_w1, B_b1, B_w2))
    return x + s * g
```

```python
import re

REG_RE = re.compile(r'^(-|abs\()?([vsa])(\d+)\)?$')
RANGE_RE = re.compile(r'^(-|abs\()?([vsa])\[(\d+):(\d+)\]\)?$')


def v(n, cnt=1):
    return f"v{n}" if cnt == 1 else f"v[{n}:{n+cnt-1}]"


def a(n, cnt=1):
    return f"a{n}" if cnt == 1 else f"a[{n}:{n+cnt-1}]"


def s(n, cnt=1):
    return f"s{n}" if cnt == 1 else f"s[{n}:{n+cnt-1}]"


def regs_of(tok):
    tok = tok.strip()
    m = REG_RE.match(tok)
    if m:
        return [(m.group(2), int(m.group(3)))]
    m = RANGE_RE.match(tok)
    if m:
        return [(m.group(2), i) for i in range(int(m.group(3)), int(m.group(4)) + 1)]
    if tok == 'vcc':
        return [('s', 106), ('s', 107)]
    if tok == 'exec':
        return [('s', 126), ('s', 127)]
    if tok == 'm0':
        return [('s', 124)]
    if tok in ('vcc_lo',):
        return [('s', 106)]
    if tok in ('vcc_hi',):
        return [('s', 107)]
    if tok == 'exec_lo':
        return [('s', 126)]
    if tok == 'exec_hi':
        return [('s', 127)]
    return []


TRANS = ('v_exp_f32', 'v_log_f32', 'v_rcp_f32', 'v_rsq_f32', 'v_sqrt_f32', 'v_sin_f32', 'v_cos_f32', 'v_rcp_iflag_f32')


def mfma_passes(op):
    if '32x32x16' in op and 'smfmac' not in op:
        return 8
    if '32x32x8' in op:
        return 8
    if 'smfmac' in op and '32x32' in op:
        return 8
    if '16x16' in op:
        return 4
    if '4x4' in op:
        return 2
    raise ValueError(op)


class Ins:
    __slots__ = ('text', 'op', 'ops', 'mods', 'kind', 'rd', 'wr', 'srcA', 'srcB', 'srcC', 'label', 'target',
                 'dpp', 'states', 'store_data', 'lds_dma')

    def __init__(self, text):
        self.text = text
        self.label = None
        self.target = None
        self.rd = []
        self.wr = []
        self.srcA = self.srcB = self.srcC = []
        self.dpp = False
        self.states = 1
        self.store_data = []
        self.lds_dma = False
        t = text.split(';')[0].strip()
        if not t:
            self.kind = 'none'
            self.op = ''
            self.states = 0
            return
        if t.endswith(':'):
            self.kind = 'label'
            self.label = t[:-1]
            self.op = ''
            self.states = 0
            return
        if t.startswith('.'):
            self.kind = 'none'
            self.op = ''
            self.states = 0
            return
        parts = t.split(None, 1)
        op = parts[0]
        for suf in ('_e32', '_e64'):
            if op.endswith(suf):
                op = op[:-4]
        self.op = op
        rest = parts[1] if len(parts) > 1 else ''
        toks = []
        depth = 0
        cur = ''
        for ch in rest:
            if ch in '[(':
                depth += 1
            if ch in '])':
                depth -= 1
            if ch == ',' and depth == 0:
                toks.append(cur.strip())
                cur = ''
            else:
                cur += ch
        if cur.strip():
            toks.append(cur.strip())
        mods = ''
        if toks:
            last = toks[-1].split(None, 1)
            toks[-1] = last[0]
            if len(last) > 1:
                mods = last[1]
        self.ops = toks
        self.mods = mods
        R = [regs_of(x) for x in toks]
        flat = lambda L: [r for x in L for r in x]
        if op.startswith('v_mfma') or op.startswith('v_smfmac'):
            self.kind = 'mfma'
            self.wr = R[0]
            self.srcA = R[1]
            self.srcB = R[2]
            if op.startswith('v_smfmac'):
                self.srcC = R[0]
                self.srcB = R[2] + R[3]
            else:
                self.srcC = R[3]
            self.rd = self.srcA + self.srcB + self.srcC
        elif op.startswith('v_'):
            self.kind = 'valu'
            self.dpp = ('_dpp' in op) or ('row_' in mods) or ('quad_perm' in mods) or ('wave_' in mods)
            if op.startswith('v_cmp'):
                self.wr = R[0]
                self.rd = flat(R[1:])
                if op.startswith('v_cmpx'):
                    self.wr = self.wr + regs_of('exec')
            elif op.startswith('v_permlane') and 'swap' in op:
                self.wr = R[0] + R[1]
                self.rd = R[0] + R[1]
            elif op in ('v_add_co_u32', 'v_sub_co_u32', 'v_subrev_co_u32', 'v_addc_co_u32', 'v_subb_co_u32',
                        'v_mad_u64_u32', 'v_div_scale_f32'):
                self.wr = R[0] + R[1]
                self.rd = flat(R[2:])
            else:
                self.wr = R[0]
                self.rd = flat(R[1:])
                if op.startswith(('v_fmac', 'v_mac', 'v_dot2c', 'v_pk_fmac', 'v_writelane')) or self.dpp:
                    self.rd = self.rd + R[0]
        elif op.startswith('ds_'):
            self.kind = 'ds'
            if op.startswith(('ds_read', 'ds_bpermute', 'ds_permute', 'ds_swizzle')) or '_rtn' in op:
                self.wr = R[0]
                self.rd = flat(R[1:])
            else:
                self.rd = flat(R)
                self.store_data = flat(R[1:])
        elif op.startswith(('buffer_', 'global_', 'flat_')):
            self.kind = 'vmem'
            is_lds = bool(re.search(r'\blds\b', mods)) or '_lds_' in op
            if op in ('buffer_wbl2', 'buffer_inv'):
                pass
            elif is_lds:
                self.lds_dma = True
                self.rd = flat(R) + regs_of('m0')
            elif '_load' in op:
                self.wr = R[0]
                self.rd = flat(R[1:])
            elif '_atomic' in op:
                self.rd = flat(R)
                if re.search(r'\bsc0\b', mods):
                    if op.startswith('buffer_'):
                        self.wr = R[0]
                    else:
                        self.wr = R[0]
                        self.rd = flat(R[1:])
            else:
                self.rd = flat(R)
                self.store_data = R[0] if op.startswith('buffer_') else R[1]
        elif op.startswith('s_'):
            self.kind = 'salu'
            if op == 's_nop':
                self.states = int(toks[0], 0) + 1
                self.kind = 'nop'
            elif op == 's_waitcnt':
                self.kind = 'wait'
            elif op in ('s_branch',) or op.startswith('s_cbranch'):
                self.kind = 'branch'
                self.target = toks[0]
            elif op in ('s_barrier', 's_endpgm', 's_sleep', 's_setprio'):
                pass
            elif op.startswith('s_cmp') or op.startswith('s_bitcmp'):
                self.rd = flat(R)
            elif op.startswith(('s_load', 's_buffer_load', 's_memtime', 's_memrealtime')):
                self.kind = 'smem'
                self.wr = R[0]
                self.rd = flat(R[1:])
            else:
                self.wr = R[0]
                self.rd = flat(R[1:])
                if 'saveexec' in op:
                    self.wr = self.wr + regs_of('exec')
        else:
            raise ValueError('unknown instruction: ' + text)


def need_states(p, c):
    n = 0
    pw = set(p.wr)
    if p.kind == 'valu':
        vw = {r for r in pw if r[0] in 'va'}
        sw = {r for r in pw if r[0] == 's'}
        if c.kind == 'mfma' and vw & set(c.rd):
            n = max(n, 2)
        if c.kind == 'mfma' and ('s', 126) in sw:
            n = max(n, 4)
        if c.kind == 'valu':
            crd = set(c.rd)
            if c.dpp and vw & crd:
                n = max(n, 2)
            if c.op.startswith('v_permlane') and vw & crd:
                n = max(n, 2)
            if c.op in ('v_readfirstlane_b32', 'v_readlane_b32') and vw & crd:
                n = max(n, 1)
            if p.op in TRANS and c.op not in TRANS and vw & crd:
                n = max(n, 1)
            if p.op in TRANS and c.op in TRANS and vw & crd:
                n = max(n, 1)
            if sw & crd:
                n = max(n, 4 if c.op in ('v_readlane_b32', 'v_writelane_b32') else 2)
            if ('s', 126) in sw and (c.dpp or c.op.startswith(('v_permlane', 'v_read', 'v_write'))):
                n = max(n, 5)
            if ('op_sel' in p.mods or 'sdwa' in p.op or 'dst_sel' in p.mods) and vw & (crd | set(c.wr)):
                n = max(n, 1)
        if c.kind == 'vmem' and sw & set(c.rd):
            n = max(n, 5)
        if c.kind in ('salu', 'branch') and sw & set(c.rd):
            n = max(n, 1)
    elif p.kind == 'mfma':
        ps = mfma_passes(p.op)
        tab_use = {2: 5, 4: 8, 8: 12, 16: 20}[ps]
        tab_c = {2: 4, 4: 6, 8: 10, 16: 18}[ps]
        tab_war = {2: 1, 4: 3, 8: 7, 16: 15}[ps]
        if c.kind == 'mfma':
            if pw & (set(c.srcA) | set(c.srcB)):
                n = max(n, tab_use)
            if pw & set(c.srcC):
                if p.wr == c.srcC and c.op == p.op:
                    n = max(n, 2 if ps == 2 else 0)
                else:
                    n = max(n, tab_c)
            elif pw & set(c.wr):
                n = max(n, tab_c)
        elif c.kind in ('valu', 'ds', 'vmem'):
            if pw & (set(c.rd) | set(c.wr)):
                n = max(n, tab_use)
            if c.kind == 'valu' and set(p.srcC) & set(c.wr):
                n = max(n, tab_war)
            if c.kind in ('ds', 'vmem') and (set(p.srcC) & set(c.wr)):
                n = max(n, tab_war)
    elif p.kind == 'salu':
        if ('s', 124) in pw and c.kind == 'vmem' and c.lds_dma:
            n = max(n, 1)
    elif p.kind == 'vmem':
        if len(p.store_data) >= 3 and set(p.store_data) & set(c.wr):
            n = max(n, 2 if c.kind == 'valu' else 1)
    return n


class Asm:
    def __init__(self):
        self.lines = []
        self._uid = 0

    def __call__(self, text):
        for ln in text.split('\n'):
            ln = ln.strip()
            if ln:
                self.lines.append(ln)

    def label(self, name):
        self.lines.append(name + ':')

    def uid(self, base='L'):
        self._uid += 1
        return f"{base}_{self._uid}"

    def comment(self, t):
        self.lines.append('; ' + t)

    def extend(self, lines):
        for ln in lines:
            self(ln)


WAIT_RE = re.compile(r'(vmcnt|lgkmcnt)\((\d+)\)')


def auto_wait(ins):
    out = []
    vm = []
    lg = []
    smem_out = False
    for i in ins:
        if i.kind in ('none',):
            out.append(i)
            continue
        if i.kind == 'label' or i.kind == 'branch':
            pend = [x for x in vm + lg if x]
            if pend and '@carry' not in i.text:
                raise RuntimeError(f"pending loads {pend} at '{i.text}' (add a wait or '; @carry')")
            out.append(i)
            continue
        if i.kind == 'wait':
            for name, n in WAIT_RE.findall(i.text.split(';')[0]):
                n = int(n)
                if name == 'vmcnt':
                    while len(vm) > n:
                        vm.pop(0)
                else:
                    while len(lg) > n:
                        lg.pop(0)
                    if n == 0:
                        smem_out = False
            out.append(i)
            continue
        touched = set(i.rd) | set(i.wr)
        needv = None
        for k, d in enumerate(vm):
            if d & touched:
                needv = len(vm) - 1 - k
        needl = None
        for k, d in enumerate(lg):
            if d & touched:
                needl = len(lg) - 1 - k
        if needv is not None or needl is not None:
            parts = []
            if needv is not None:
                needv = min(needv, 63)
                parts.append(f"vmcnt({needv})")
                while len(vm) > needv:
                    vm.pop(0)
            if needl is not None:
                if smem_out:
                    needl = 0
                    smem_out = False
                needl = min(needl, 15)
                parts.append(f"lgkmcnt({needl})")
                while len(lg) > needl:
                    lg.pop(0)
            out.append(Ins('s_waitcnt ' + ' '.join(parts)))
        if i.kind == 'vmem':
            vm.append(set(i.wr))
        elif i.kind == 'ds':
            lg.append(set(i.wr))
        elif i.kind == 'smem':
            lg.append(set(i.wr))
            smem_out = True
        out.append(i)
    return out


def fix_hazards(ins, window=24):
    out = []
    for c in ins:
        if c.kind in ('none', 'label'):
            out.append(c)
            continue
        need = 0
        dist = 0
        for p in reversed(out):
            if p.kind in ('none', 'label'):
                continue
            if dist >= window:
                break
            n = need_states(p, c)
            if n - dist > need:
                need = n - dist
            dist += p.states
            if p.kind == 'branch' and p.op == 's_branch':
                break
        while need > 0:
            k = min(need, 16)
            out.append(Ins(f"s_nop {k-1}"))
            need -= k
        out.append(c)
    labels = {x.label: k for k, x in enumerate(out) if x.kind == 'label'}
    changed = True
    while changed:
        changed = False
        labels = {x.label: k for k, x in enumerate(out) if x.kind == 'label'}
        for k, b in enumerate(out):
            if b.kind != 'branch':
                continue
            t = labels[b.target]
            prods = []
            dist = b.states
            for p in reversed(out[:k]):
                if p.kind in ('none', 'label'):
                    continue
                if dist >= window:
                    break
                prods.append((p, dist))
                dist += p.states
            worst = 0
            d2 = 0
            for c in out[t:]:
                if c.kind in ('none', 'label'):
                    continue
                if d2 >= window:
                    break
                for p, dist in prods:
                    n = need_states(p, c) - (dist + d2)
                    worst = max(worst, n)
                d2 += c.states
                if c.kind == 'branch' and c.op == 's_branch':
                    break
            if worst > 0:
                out.insert(k, Ins(f"s_nop {min(worst,16)-1}"))
                changed = True
                break
    return out


def finalize(lines, waits=True):
    ins = [Ins(x) for x in lines]
    if waits:
        ins = auto_wait(ins)
    ins = fix_hazards(ins)
    txt = []
    for i in ins:
        if i.kind == 'label':
            txt.append(i.text)
        else:
            txt.append('    ' + i.text)
    return '\n'.join(txt) + '\n'
```

```python
from asmlib import *

NAME = "recurrent_scan__memory_aug_recurrent_mem_tr__dense_activation_mish__prompt"

NSEG = 64
XN_OFF = 0
XN_SEG = 40960
QC_OFF = 0x0400000
KC_OFF = 0x1400000
VC_OFF = 0x2400000
OC_OFF = 0x3400000
HC_OFF = 0x4400000
HC_SEG = 54 * 2048
KM_OFF = 0x4C00000
VM_OFF = 0x5000000
MEML_OFF = 0x5400000
MEMR_OFF = 0x5520000
PART_OFF = 0x5640000
FLAG_OFF = 0x5700000
WS_BYTES = 0x10000000

S_X, S_MEM0, S_WQ, S_WK, S_WV, S_WO = 4, 6, 8, 10, 12, 14
S_W1, S_B1, S_W2, S_OUT, S_DBG, S_WS = 20, 22, 24, 26, 28, 30
R_WS = 32
R_A = 36
R_B = 40
R_DBG = 44
R_C = 48


def load_kernargs(k):
    k("s_load_dwordx16 s[4:19], s[0:1], 0")
    k("s_load_dwordx8 s[20:27], s[0:1], 64")
    k("s_load_dwordx4 s[28:31], s[0:1], 96")
    k("s_waitcnt lgkmcnt(0)")


def make_srd(k, r, ptr, nbytes):
    k(f"s_mov_b32 s{r}, s{ptr}")
    k(f"s_and_b32 s{r+1}, s{ptr+1}, 0xffff")
    k(f"s_mov_b32 s{r+2}, {nbytes:#x}")
    k(f"s_mov_b32 s{r+3}, 0x00020000")


def kernel_header(name):
    return [".globl " + name, ".p2align 8", f".type {name},@function", name + ":"]


def kernel_desc(name, vgpr=512, accum=256, sgpr=102):
    return f""".p2align 6
.amdhsa_kernel {name}
  .amdhsa_next_free_vgpr {vgpr}
  .amdhsa_next_free_sgpr {sgpr}
  .amdhsa_accum_offset {accum}
  .amdhsa_group_segment_fixed_size 0
  .amdhsa_kernarg_size 112
  .amdhsa_user_sgpr_count 2
  .amdhsa_user_sgpr_kernarg_segment_ptr 1
  .amdhsa_system_sgpr_workgroup_id_x 1
.end_amdhsa_kernel
"""


def wreg(i, cnt=1):
    if i < 256:
        assert i + cnt <= 256
        return v(i, cnt)
    return a(i - 256, cnt)
```

```python
from common import *

SCALE_LOG2E = (128 ** -0.5) * 1.4426950408889634
A_Q, A_K, A_V = 16, 48, 80
A_KM = 112
A_VM = 144
A_MASK = 152
A_S = 168
A_SM = 184
A_P = 200
A_O = 48


def att_setup(k, s_w, st):
    k("v_and_b32 v1, 63, v0")
    k("v_lshlrev_b32 v2, 4, v1")
    k("v_lshrrev_b32 v5, 5, v1")
    k("v_bfe_u32 v6, v1, 2, 2")
    k("v_lshl_add_u32 v3, v5, 2, v6")
    k("v_lshlrev_b32 v3, 4, v3")
    k("v_and_b32 v6, 1, v1")
    k("v_lshl_add_u32 v3, v6, 3, v3")
    k(f"s_lshl_b32 s{st}, s{s_w}, 11")
    k(f"v_add_u32 v3, s{st}, v3")
    k("v_and_b32 v6, 31, v1")
    k("v_lshlrev_b32 v4, 4, v6")
    k("v_lshl_add_u32 v4, v5, 3, v4")
    k("v_lshlrev_b32 v5, 2, v5")
    k("v_sub_u32 v6, v6, v5")
    k("v_mov_b32 v7, 0xf149f2ca")
    for r in range(16):
        key = 8 * (r // 4) + r % 4
        k(f"v_cmp_gt_i32 vcc, {key}, v6")
        k(f"v_cndmask_b32 v{A_MASK+r}, 0, v7, vcc")
    k(f"s_mov_b32 s{st+1}, {SCALE_LOG2E!r}")


def att_unit(k, s_unit, st, sc1=True, hook_qkv=None, hook_kv=None, hook_done=None):
    sc = " sc1" if sc1 else ""
    S_L, S_C, S_O, S_T, S_M = st, st + 1, st + 2, st + 3, st + 4
    if hook_qkv:
        hook_qkv(k)
    k(f"s_lshl_b32 s{S_O}, s{s_unit}, 13")
    for base, off in ((A_K, KC_OFF), (A_Q, QC_OFF), (A_V, VC_OFF)):
        for half in range(2):
            k(f"s_add_u32 s{S_T}, s{S_O}, {off + half*4096}")
            for i in range(4):
                k(f"buffer_load_dwordx4 {v(base+16*half+4*i,4)}, v2, {s(R_WS,4)}, s{S_T} offen offset:{1024*i}{sc}")
    for i in range(8):
        c = v(A_MASK, 16) if i == 0 else v(A_S, 16)
        k(f"v_mfma_f32_32x32x16_bf16 {v(A_S,16)}, {v(A_K+4*i,4)}, {v(A_Q+4*i,4)}, {c}")
    if hook_kv:
        hook_kv(k)
    k(f"s_lshl_b32 s{S_M}, s{s_unit}, 11")
    k(f"s_add_u32 s{S_T}, s{S_M}, {KM_OFF}")
    k(f"s_mov_b32 m0, s{S_L}")
    k(f"buffer_load_dwordx4 v2, {s(R_WS,4)}, s{S_T} offen{sc} lds")
    k(f"buffer_load_dwordx4 v2, {s(R_WS,4)}, s{S_T} offen offset:1024{sc} lds")
    k(f"s_add_u32 s{S_T}, s{S_M}, {VM_OFF}")
    for kap in range(4):
        k(f"buffer_load_dwordx2 {v(A_VM+2*kap,2)}, v4, {s(R_WS,4)}, s{S_T} offen offset:{512*kap}{sc}")
    k(f"v_max3_f32 v8, v{A_S}, v{A_S+1}, v{A_S+2}")
    k(f"v_max3_f32 v9, v{A_S+3}, v{A_S+4}, v{A_S+5}")
    for i in range(6, 16, 4):
        k(f"v_max3_f32 v8, v8, v{A_S+i}, v{A_S+i+1}")
        if i + 3 < 16:
            k(f"v_max3_f32 v9, v9, v{A_S+i+2}, v{A_S+i+3}")
    k("v_max_f32 v8, v8, v9")
    k("s_waitcnt vmcnt(4)")
    for i in range(8):
        for jq in range(2):
            k(f"ds_read_b64_tr_b16 {v(A_KM+4*i+2*jq,2)}, v3 offset:{128*(2*i+jq)}")
    for i in range(8):
        c = '0' if i == 0 else v(A_SM, 16)
        k(f"v_mfma_f32_32x32x16_bf16 {v(A_SM,16)}, {v(A_KM+4*i,4)}, {v(A_Q+4*i,4)}, {c}")
    k(f"v_max3_f32 v8, v8, v{A_SM}, v{A_SM+1}")
    k(f"v_max3_f32 v8, v8, v{A_SM+2}, v{A_SM+3}")
    k("v_mov_b32 v9, v8")
    k("v_permlane32_swap_b32 v8, v9")
    k("v_max_f32 v8, v8, v9")
    k(f"v_mul_f32 v8, s{S_C}, v8")
    regs = [A_S + i for i in range(16)] + [A_SM + i for i in range(4)]
    for r in regs:
        k(f"v_fma_f32 v{r}, v{r}, s{S_C}, -v8")
    for r in regs:
        k(f"v_exp_f32 v{r}, v{r}")
    k(f"v_add_f32 v8, v{regs[0]}, v{regs[1]}")
    k(f"v_add_f32 v9, v{regs[2]}, v{regs[3]}")
    for i in range(4, 20, 2):
        k(f"v_add_f32 v8, v8, v{regs[i]}")
        k(f"v_add_f32 v9, v9, v{regs[i+1]}")
    k("v_add_f32 v8, v8, v9")
    k("v_mov_b32 v9, v8")
    k("v_permlane32_swap_b32 v8, v9")
    k("v_add_f32 v8, v8, v9")
    k("v_rcp_f32 v8, v8")
    for r in regs:
        k(f"v_mul_f32 v{r}, v{r}, v8")
    for i in range(10):
        k(f"v_cvt_pk_bf16_f32 v{A_P+i}, v{regs[2*i]}, v{regs[2*i+1]}")
    O = 16
    for kap in range(4):
        k(f"v_mfma_f32_32x32x8_bf16 {v(O+16*kap,16)}, {v(A_VM+2*kap,2)}, {v(A_P+8,2)}, 0")
    for ih in range(2):
        for kap in range(4):
            k(f"v_mfma_f32_32x32x16_bf16 {v(O+16*kap,16)}, {v(A_V+8*kap+4*ih,4)}, {v(A_P+4*ih,4)}, {v(O+16*kap,16)}")
    for kap in range(4):
        if kap % 2 == 0:
            k(f"s_add_u32 s{S_T}, s{S_O}, {OC_OFF + kap*2048}")
        for ih in range(2):
            d = A_KM + 4 * (2 * kap + ih)
            b = O + 16 * kap + 8 * ih
            for x in range(4):
                k(f"v_cvt_pk_bf16_f32 v{d+x}, v{b+2*x}, v{b+2*x+1}")
            k(f"buffer_store_dwordx4 {v(d,4)}, v2, {s(R_WS,4)}, s{S_T} offen offset:{(kap%2)*2048+ih*1024}{sc}")
    if hook_done:
        hook_done(k)


def k_att():
    k = Asm()
    k._uid = 3000
    k("s_cmp_ge_u32 s2, 256")
    k("s_cbranch_scc1 Lat_end")
    load_kernargs(k)
    make_srd(k, R_WS, S_WS, WS_BYTES)
    k("v_lshrrev_b32 v1, 6, v0")
    k("v_readfirstlane_b32 s3, v1")
    att_setup(k, 3, 52)
    k("s_lshl_b32 s60, s2, 2")
    k("s_add_u32 s60, s60, s3")
    k("Lat_loop:")
    att_unit(k, 60, 52)
    k("s_add_u32 s60, s60, 1024")
    k("s_cmp_lt_u32 s60, 2048")
    k("s_cbranch_scc1 Lat_loop")
    k("Lat_end:")
    k("s_endpgm")
    return ("att_kernel", 256, 8192, k)
```

```python
from common import *


def role_ln(k, s_task, sc1=True, st=52):
    sc = " sc1" if sc1 else ""
    make_srd(k, R_A, S_X, 2048 * 1280)
    k("v_and_b32 v1, 63, v0")
    k("v_and_b32 v3, 7, v1")
    k("v_lshrrev_b32 v4, 3, v1")
    k("v_mul_u32_u24 v5, 1280, v3")
    k("v_lshl_add_u32 v5, v4, 4, v5")
    k("v_lshlrev_b32 v6, 9, v4")
    k("v_lshl_add_u32 v6, v3, 4, v6")
    k(f"s_mul_i32 s{st}, s{s_task}, 10240")
    k(f"s_lshr_b32 s{st+1}, s{s_task}, 2")
    k(f"s_mul_i32 s{st+1}, s{st+1}, {XN_SEG}")
    k(f"s_and_b32 s{st+2}, s{s_task}, 3")
    k(f"s_lshl_b32 s{st+2}, s{st+2}, 7")
    k(f"s_add_u32 s{st+1}, s{st+1}, s{st+2}")
    if XN_OFF:
        k(f"s_add_u32 s{st+1}, s{st+1}, {XN_OFF}")
    L = 16
    F = 64
    for i in range(10):
        k(f"buffer_load_dwordx4 {v(L+4*i,4)}, v5, {s(R_A,4)}, s{st} offen offset:{128*i}")
    k(f"s_mov_b32 s{st+3}, 0xffff0000")
    for d in range(40):
        k(f"v_lshlrev_b32 v{F+2*d}, 16, v{L+d}")
        k(f"v_and_b32 v{F+2*d+1}, s{st+3}, v{L+d}")

    def xsum(r, t):
        k(f"v_add_f32_dpp v{r}, v{r}, v{r} row_ror:8 row_mask:0xf bank_mask:0xf")
        k(f"v_mov_b32 v{t}, v{r}")
        k(f"v_permlane16_swap_b32 v{r}, v{t}")
        k(f"v_add_f32 v{r}, v{r}, v{t}")
        k(f"v_mov_b32 v{t}, v{r}")
        k(f"v_permlane32_swap_b32 v{r}, v{t}")
        k(f"v_add_f32 v{r}, v{r}, v{t}")

    for j in range(4):
        k(f"v_add_f32 v{8+j}, v{F+j}, v{F+4+j}")
    for i in range(2, 20):
        for j in range(4):
            k(f"v_add_f32 v{8+j}, v{8+j}, v{F+4*i+j}")
    k("v_add_f32 v8, v8, v9")
    k("v_add_f32 v10, v10, v11")
    k("v_add_f32 v8, v8, v10")
    xsum(8, 9)
    k(f"v_mul_f32 v8, {1.0/640!r}, v8")
    for i in range(20):
        for j in range(4):
            k(f"v_sub_f32 v{56+j}, v{F+4*i+j}, v8")
        for j in range(4):
            if i == 0:
                k(f"v_mul_f32 v{10+j}, v{56+j}, v{56+j}")
            else:
                k(f"v_fmac_f32 v{10+j}, v{56+j}, v{56+j}")
    k("v_add_f32 v10, v10, v11")
    k("v_add_f32 v12, v12, v13")
    k("v_add_f32 v10, v10, v12")
    xsum(10, 9)
    k(f"v_mul_f32 v10, {1.0/640!r}, v10")
    k("v_cvt_pk_bf16_f32 v9, v8, v10")
    k("v_lshlrev_b32 v8, 16, v9")
    k(f"v_and_b32 v10, s{st+3}, v9")
    k("v_add_f32 v10, 0x3727c5ac, v10")
    k("v_cvt_pk_bf16_f32 v10, v10, v10")
    k("v_lshlrev_b32 v10, 16, v10")
    k("v_sqrt_f32 v10, v10")
    k("v_cvt_pk_bf16_f32 v10, v10, v10")
    k("v_lshlrev_b32 v10, 16, v10")
    k("v_rcp_f32 v10, v10")
    for i in range(10):
        for d in range(4 * i, 4 * i + 4):
            a0, a1 = F + 2 * d, F + 2 * d + 1
            k(f"v_sub_f32 v{a0}, v{a0}, v8")
            k(f"v_sub_f32 v{a1}, v{a1}, v8")
            k(f"v_cvt_pk_bf16_f32 v{L+d}, v{a0}, v{a1}")
            k(f"v_lshlrev_b32 v{a0}, 16, v{L+d}")
            k(f"v_and_b32 v{a1}, s{st+3}, v{L+d}")
            k(f"v_mul_f32 v{a0}, v{a0}, v10")
            k(f"v_mul_f32 v{a1}, v{a1}, v10")
            k(f"v_cvt_pk_bf16_f32 v{L+d}, v{a0}, v{a1}")
        k(f"buffer_store_dwordx4 {v(L+4*i,4)}, v6, {s(R_WS,4)}, s{st+1} offen{sc}")
        if i < 9:
            k(f"s_add_u32 s{st+1}, s{st+1}, 4096")
```

```python
from common import *

LOG2E = 1.4426950408889634
O_S, O_G = 16, 32
O_R = 48
NR = 24
O_WH = 148
RS = 640
RW = 8 * RS * 2
RBUF = 4 * RW


def ow(p):
    return v(O_WH + 4 * p, 4) if p < 27 else a(4 * (p - 27), 4)


def ow2(p, jq):
    return v(O_WH + 4 * p + 2 * jq, 2) if p < 27 else a(4 * (p - 27) + 2 * jq, 2)


def out_load_weights(k, s_w, s_cg, st):
    make_srd(k, R_A, S_W2, 1728 * 1280)
    make_srd(k, R_B, S_WO, 4096 * 1280)
    k("v_lshrrev_b32 v2, 2, v1")
    k("v_mul_u32_u24 v2, 1280, v2")
    k("v_and_b32 v3, 3, v1")
    k("v_lshl_add_u32 v2, v3, 4, v2")
    k("v_lshlrev_b32 v3, 3, v3")
    k("v_lshrrev_b32 v4, 5, v1")
    k("v_lshl_add_u32 v3, v4, 8, v3")
    k("v_bfe_u32 v4, v1, 2, 2")
    k("v_lshl_add_u32 v3, v4, 6, v3")
    k("v_bfe_u32 v4, v1, 4, 1")
    k("v_lshl_add_u32 v3, v4, 5, v3")
    k(f"s_mul_i32 s{st}, s{s_w}, 40960")
    k(f"v_add_u32 v3, s{st}, v3")
    k(f"s_lshl_b32 s{st+3}, s{s_cg}, 6")
    k(f"s_mul_i32 s{st+1}, s{s_w}, {27*16*1280}")
    k(f"s_add_u32 s{st+1}, s{st+1}, s{st+3}")
    k(f"s_mul_i32 s{st+2}, s{s_w}, {64*16*1280}")
    k(f"s_add_u32 s{st+2}, s{st+2}, s{st+3}")

    def issue(p):
        k(f"s_add_u32 m0, s{st}, {(p%40)*1024}")
        if p < 27:
            k(f"s_add_u32 s{st+3}, s{st+1}, {p*16*1280}")
            k(f"buffer_load_dwordx4 v2, {s(R_A,4)}, s{st+3} offen lds")
        else:
            k(f"s_add_u32 s{st+3}, s{st+2}, {(p-27)*16*1280}")
            k(f"buffer_load_dwordx4 v2, {s(R_B,4)}, s{st+3} offen lds")

    for p in range(40):
        issue(p)
    G = 4
    for p0 in range(0, 91, G):
        ps = list(range(p0, min(91, p0 + G)))
        issued = min(91, p0 + 40)
        k(f"s_waitcnt vmcnt({issued - (ps[-1] + 1)})")
        for p in ps:
            for jq in range(2):
                k(f"ds_read_b64_tr_b16 {ow2(p,jq)}, v3 offset:{(p%40)*1024 + jq*512}")
        k("s_waitcnt lgkmcnt(0)")
        for p in ps:
            if p + 40 < 91:
                issue(p + 40)


def bfr(k, r, t):
    k(f"v_cvt_pk_bf16_f32 v{t}, v{r}, v{r+1}")
    k(f"v_lshlrev_b32 v{r}, 16, v{t}")
    k(f"v_and_b32 v{r+1}, 0xffff0000, v{t}")


def out_setup(k, s_w, s_cg, st):
    make_srd(k, R_A, S_X, 2048 * 1280)
    make_srd(k, R_B, S_OUT, 2048 * 1280)
    k("v_lshlrev_b32 v2, 4, v1")
    k("v_lshrrev_b32 v4, 5, v1")
    k(f"v_mul_u32_u24 v3, {RS}, v4")
    k("v_and_b32 v4, 31, v1")
    k("v_lshl_add_u32 v3, v4, 4, v3")
    k(f"s_mul_i32 s{st}, s{s_w}, {RW}")
    k(f"v_add_u32 v3, s{st}, v3")
    k("v_and_b32 v5, 7, v1")
    k(f"v_mul_u32_u24 v4, {RS}, v5")
    k("v_lshrrev_b32 v6, 3, v1")
    k(f"s_lshl_b32 s{st}, s{s_w}, 3")
    k(f"v_add_u32 v6, s{st}, v6")
    k("v_lshl_add_u32 v4, v6, 4, v4")
    k("v_mul_u32_u24 v6, 1280, v6")
    k("v_lshl_add_u32 v5, v5, 3, v6")
    k(f"s_lshl_b32 s{st}, s{s_cg}, 6")
    k(f"v_add_u32 v5, s{st}, v5")


def out_main(k, s_w, s_seg, s_nt, s_step, st, sc1=True):
    sc = " sc1" if sc1 else ""
    S_HO, S_OO, S_T, S_I, S_BUF, S_NX, S_XO, S_HW, S_OW = range(st, st + 9)
    k(f"s_mul_i32 s{S_HW}, s{s_w}, {27*1024}")
    k(f"s_add_u32 s{S_HW}, s{S_HW}, {HC_OFF}")
    k(f"s_lshl_b32 s{S_OW}, s{s_w}, 16")
    k(f"s_add_u32 s{S_OW}, s{S_OW}, {OC_OFF}")

    def offsets(sreg):
        k(f"s_mul_i32 s{S_HO}, s{sreg}, {HC_SEG}")
        k(f"s_add_u32 s{S_HO}, s{S_HO}, s{S_HW}")

    def offsets_o(sreg):
        k(f"s_lshl_b32 s{S_OO}, s{sreg}, 18")
        k(f"s_add_u32 s{S_OO}, s{S_OO}, s{S_OW}")

    def load(p):
        base, q = (S_HO, p) if p < 27 else (S_OO, p - 27)
        if q % 4 == 0 and q > 0:
            k(f"s_add_u32 s{base}, s{base}, 4096")
        k(f"buffer_load_dwordx4 {v(O_R+4*(p%NR),4)}, v2, {s(R_WS,4)}, s{base} offen offset:{(q%4)*1024}{sc}")

    k("s_barrier")
    k(f"s_mov_b32 s{S_I}, 0")
    k(f"s_mov_b32 s{S_BUF}, 0")
    offsets(s_seg)
    for p in range(NR):
        load(p)
    Ltop = k.uid('Lout')
    k(f"{Ltop}: ; @carry")
    offsets_o(s_seg)
    k(f"s_mul_i32 s{S_XO}, s{s_seg}, {32*1280}")
    k(f"s_add_u32 s{S_I}, s{S_I}, 1")
    k(f"s_add_u32 s{S_NX}, s{s_seg}, s{s_step}")
    k(f"s_cmp_lt_u32 s{S_I}, s{s_nt}")
    k(f"s_cselect_b32 s{S_NX}, s{S_NX}, s{s_seg}")
    for p in range(91):
        acc = O_G if p < 27 else O_S
        c = '0' if p in (0, 27) else v(acc, 16)
        k(f"v_mfma_f32_32x32x16_bf16 {v(acc,16)}, {ow(p)}, {v(O_R+4*(p%NR),4)}, {c}")
        if p + NR < 91:
            load(p + NR)
        elif p == 67:
            k(f"buffer_load_dwordx2 v[8:9], v5, {s(R_A,4)}, s{S_XO} offen")
        elif p >= 72:
            if p == 72:
                offsets(S_NX)
            load(p - 72)
        if p == 30:
            k(f"v_add_u32 v6, s{S_BUF}, v3")
            k(f"v_add_u32 v7, s{S_BUF}, v4")
            for q in range(4):
                k(f"ds_write_b128 v6, {v(O_G+4*q,4)} offset:{8*RS + q*2*RS}")
    for p in range(19, NR):
        load(p)
    for q in range(4):
        k(f"ds_write_b128 v6, {v(O_S+4*q,4)} offset:{q*2*RS}")
    k("s_waitcnt lgkmcnt(0)")
    k("s_barrier")
    for w in range(4):
        k(f"ds_read_b128 {v(O_G+4*w,4)}, v7 offset:{w*RW + 8*RS}")
    for w in range(4):
        k(f"ds_read_b128 {v(O_S+4*w,4)}, v7 offset:{w*RW}")
    k(f"s_xor_b32 s{S_BUF}, s{S_BUF}, {RBUF}")
    for acc in (O_G, O_S):
        for j in range(4):
            k(f"v_add_f32 v{acc+j}, v{acc+j}, v{acc+4+j}")
            k(f"v_add_f32 v{acc+8+j}, v{acc+8+j}, v{acc+12+j}")
        for j in range(4):
            k(f"v_add_f32 v{acc+j}, v{acc+j}, v{acc+8+j}")
        bfr(k, acc, 10)
        bfr(k, acc + 2, 11)
        if acc == O_G:
            for j in range(4):
                k(f"v_mul_f32 v{acc+4+j}, {-LOG2E!r}, v{acc+j}")
            for j in range(4):
                k(f"v_exp_f32 v{acc+4+j}, v{acc+4+j}")
            for j in range(4):
                k(f"v_add_f32 v{acc+4+j}, 1.0, v{acc+4+j}")
            for j in range(4):
                k(f"v_rcp_f32 v{acc+4+j}, v{acc+4+j}")
            for j in range(4):
                k(f"v_mul_f32 v{acc+j}, v{acc+j}, v{acc+4+j}")
            bfr(k, acc, 10)
            bfr(k, acc + 2, 11)
    for j in range(4):
        k(f"v_mul_f32 v{O_S+j}, v{O_S+j}, v{O_G+j}")
    bfr(k, O_S, 10)
    bfr(k, O_S + 2, 11)
    k(f"v_lshlrev_b32 v{O_G}, 16, v8")
    k(f"v_and_b32 v{O_G+1}, 0xffff0000, v8")
    k(f"v_lshlrev_b32 v{O_G+2}, 16, v9")
    k(f"v_and_b32 v{O_G+3}, 0xffff0000, v9")
    for j in range(4):
        k(f"v_add_f32 v{O_S+j}, v{O_S+j}, v{O_G+j}")
    k(f"v_cvt_pk_bf16_f32 v10, v{O_S}, v{O_S+1}")
    k(f"v_cvt_pk_bf16_f32 v11, v{O_S+2}, v{O_S+3}")
    k(f"buffer_store_dwordx2 v[10:11], v5, {s(R_B,4)}, s{S_XO} offen")
    k(f"s_mov_b32 s{s_seg}, s{S_NX}")
    k(f"s_cmp_lt_u32 s{S_I}, s{s_nt}")
    k(f"s_cbranch_scc1 {Ltop} ; @carry")
    k("s_waitcnt vmcnt(0)")


def k_out():
    k = Asm()
    k._uid = 4000
    k("s_cmp_ge_u32 s2, 240")
    k("s_cbranch_scc1 Lou_end")
    load_kernargs(k)
    make_srd(k, R_WS, S_WS, WS_BYTES)
    k("v_lshrrev_b32 v1, 6, v0")
    k("v_readfirstlane_b32 s3, v1")
    k("v_and_b32 v1, 63, v0")
    k("s_mul_hi_u32 s91, s2, 0x15555556")
    k("s_mul_i32 s90, s91, 12")
    k("s_sub_u32 s90, s2, s90")
    k("s_cmp_lt_u32 s90, 4")
    k("s_cselect_b32 s92, 6, 5")
    k("s_mov_b32 s93, 12")
    out_load_weights(k, 3, 91, 52)
    out_setup(k, 3, 91, 52)
    out_main(k, 3, 90, 92, 93, 52)
    k("Lou_end:")
    k("s_endpgm")
    return ("out_kernel", 240, 163840, k)
```

```python
from common import *

P_ACC = 128
P_AB = 104
P_T = 64
P_BIAS = 32
NB = 5
LOG2E = 1.4426950408889634


def pw(ks, ct):
    f = ks * 2 + ct
    return a(4 * f, 4) if f < 64 else v(192 + 4 * (f - 64), 4)


def pw2(ks, ct, jq):
    f = ks * 2 + ct
    return a(4 * f + 2 * jq, 2) if f < 64 else v(192 + 4 * (f - 64) + 2 * jq, 2)


def proj_load_weights(k, s_w, s_stride, s_col, st):
    k("v_lshrrev_b32 v2, 3, v1")
    k(f"v_mul_lo_u32 v2, v2, s{s_stride}")
    k("v_and_b32 v3, 7, v1")
    k("v_lshl_add_u32 v2, v3, 4, v2")
    k("v_lshrrev_b32 v3, 5, v1")
    k("v_lshlrev_b32 v3, 10, v3")
    k("v_bfe_u32 v4, v1, 2, 2")
    k("v_lshl_add_u32 v3, v4, 7, v3")
    k("v_bfe_u32 v4, v1, 4, 1")
    k("v_lshl_add_u32 v3, v4, 5, v3")
    k("v_and_b32 v4, 3, v1")
    k("v_lshl_add_u32 v3, v4, 3, v3")
    k(f"s_mul_i32 s{st}, s{s_w}, 40960")
    k(f"v_add_u32 v3, s{st}, v3")
    k(f"s_lshl_b32 s{st+1}, s{s_stride}, 3")
    k(f"s_mov_b32 s{st+2}, s{s_col}")

    def issue(ks):
        slot = ks % 20
        for i in range(2):
            k(f"s_add_u32 m0, s{st}, {slot*2048 + i*1024}")
            k("s_nop 0")
            k(f"buffer_load_dwordx4 v2, {s(R_A,4)}, s{st+2} offen lds")
            k(f"s_add_u32 s{st+2}, s{st+2}, s{st+1}")

    for ks in range(20):
        issue(ks)
    for ks in range(40):
        out = min(40, ks + 20) - (ks + 1)
        k(f"s_waitcnt vmcnt({2*out})")
        slot = ks % 20
        for ct in range(2):
            for jq in range(2):
                k(f"ds_read_b64_tr_b16 {pw2(ks,ct,jq)}, v3 offset:{slot*2048 + jq*512 + ct*64}")
        if ks + 20 < 40:
            k("s_waitcnt lgkmcnt(0)")
            issue(ks + 20)
    k("s_waitcnt lgkmcnt(0)")


def epilogue_ops(kind, acc, s_st, sc):
    ops = []
    for ct in range(2):
        for ih in range(2):
            g = ct * 2 + ih
            base = acc + 16 * ct + 8 * ih
            dst = P_T + 4 * (g % 2)
            if kind == 'H':
                T = P_T + 8 + 16 * (g % 2)
                for x in range(8):
                    ops.append(f"v_mul_f32 v{T+x}, {LOG2E!r}, v{base+x}")
                for x in range(8):
                    ops.append(f"v_min_f32 v{T+x}, 0x41f00000, v{T+x}")
                for x in range(8):
                    ops.append(f"v_exp_f32 v{T+x}, v{T+x}")
                for x in range(8):
                    ops.append(f"v_add_f32 v{T+8+x}, 2.0, v{T+x}")
                for x in range(8):
                    ops.append(f"v_mul_f32 v{T+8+x}, v{T+8+x}, v{T+x}")
                for x in range(8):
                    ops.append(f"v_add_f32 v{T+x}, 2.0, v{T+8+x}")
                for x in range(8):
                    ops.append(f"v_rcp_f32 v{T+x}, v{T+x}")
                for x in range(8):
                    ops.append(f"v_mul_f32 v{T+8+x}, v{T+8+x}, v{base+x}")
                for x in range(8):
                    ops.append(f"v_mul_f32 v{T+8+x}, v{T+8+x}, v{T+x}")
                src = T + 8
            else:
                src = base
            for x in range(4):
                ops.append(f"v_cvt_pk_bf16_f32 v{dst+x}, v{src+2*x}, v{src+2*x+1}")
            ops.append(f"buffer_store_dwordx4 {v(dst,4)}, v5, {s(R_WS,4)}, s{s_st} offen offset:{g*1024}{sc}")
    return ops


def cost(op):
    if op.startswith(('v_exp', 'v_rcp')):
        return 2
    if op.startswith('s_'):
        return 1
    if op.startswith('buffer_'):
        return 3
    return 1


def proj_main(k, kind, s_w, s_seg, s_nt, s_segstep, s_obase, s_ostride, st, sc1=True, hook_top=None, tag=''):
    sc = " sc1" if sc1 else ""
    S_I, S_SLOT, S_DSLOT, S_DSEG, S_ST, S_CUR, S_LAST, S_T, S_DOFF, S_W10 = range(st, st + 10)
    k("v_lshlrev_b32 v5, 4, v1")
    k(f"s_mul_i32 s{S_W10}, s{s_w}, 10240")
    k(f"s_sub_u32 s{S_T}, s{s_nt}, 1")
    k(f"s_mul_i32 s{S_LAST}, s{S_T}, s{s_segstep}")
    k(f"s_add_u32 s{S_LAST}, s{S_LAST}, s{s_seg}")

    def dma_ops():
        ops = []
        ops.append(f"s_min_u32 s{S_T}, s{S_DSEG}, s{S_LAST}")
        ops.append(f"s_mul_i32 s{S_DOFF}, s{S_T}, {XN_SEG}")
        ops.append(f"s_add_u32 s{S_DOFF}, s{S_DOFF}, s{S_W10}")
        if XN_OFF:
            ops.append(f"s_add_u32 s{S_DOFF}, s{S_DOFF}, {XN_OFF}")
        ops.append(f"s_add_u32 m0, s{S_DSLOT}, s{S_W10}")
        for j in range(10):
            if j in (4, 8):
                ops.append(f"s_add_u32 s{S_DOFF}, s{S_DOFF}, 4096")
                ops.append("s_add_u32 m0, m0, 4096")
            ops.append(f"buffer_load_dwordx4 v5, {s(R_WS,4)}, s{S_DOFF} offen offset:{(j%4)*1024}{sc} lds")
        ops.append(f"s_add_u32 s{S_DSEG}, s{S_DSEG}, s{s_segstep}")
        ops.append(f"s_add_u32 s{S_DSLOT}, s{S_DSLOT}, 40960")
        ops.append(f"s_cmp_eq_u32 s{S_DSLOT}, {3*40960}")
        ops.append(f"s_cselect_b32 s{S_DSLOT}, 0, s{S_DSLOT}")
        return ops

    k("s_barrier")
    k(f"s_mov_b32 s{S_DSEG}, s{s_seg}")
    k(f"s_mov_b32 s{S_DSLOT}, 0")
    k.extend(dma_ops())
    k.extend(dma_ops())
    k(f"s_mov_b32 s{S_I}, 0")
    k(f"s_mov_b32 s{S_SLOT}, 0")
    k(f"s_mov_b32 s{S_ST}, {WS_BYTES:#x}")
    k(f"s_mul_i32 s{S_CUR}, s{s_seg}, s{s_ostride}")
    k(f"s_add_u32 s{S_CUR}, s{S_CUR}, s{s_obase}")
    k(f"s_mul_i32 s{S_LAST+4}, s{s_segstep}, s{s_ostride}")
    S_OSTEP = S_LAST + 4
    k("v_mov_b32 v6, v5")
    k("s_waitcnt vmcnt(10)")
    k("s_barrier")
    for ks in range(NB):
        k(f"ds_read_b128 {v(P_AB+4*ks,4)}, v6 offset:{ks*1024}")
    Ltop = k.uid('Lproj' + tag)
    Lend = [k.uid('Lprojend' + tag), k.uid('Lprojend' + tag)]
    Ldone = k.uid('Lprojdone' + tag)
    k(f"{Ltop}: ; @carry")
    for half in range(2):
        acc = P_ACC + 32 * half
        prev = P_ACC + 32 * (1 - half)
        ep = epilogue_ops(kind, prev, S_ST, sc)
        dm = dma_ops()
        if kind == 'H':
            fill = dm + ep
            nwait = 14
        else:
            fill = ep + dm
            nwait = 10
        total = sum(cost(x) for x in fill)
        nslots = 2 * 36 - 2
        per = max(total / nslots, 2.0 if kind != 'H' else 0)
        credit = 0.0
        fi = 0
        for ks in range(40):
            ab = v(P_AB + 4 * (ks % NB), 4)
            for ct in range(2):
                d = v(acc + 16 * ct, 16)
                if ks == 0:
                    c = v(P_BIAS + 16 * ct, 16) if kind == 'H' else '0'
                else:
                    c = d
                if kind == 'V':
                    k(f"v_mfma_f32_32x32x16_bf16 {d}, {ab}, {pw(ks,ct)}, {c}")
                else:
                    k(f"v_mfma_f32_32x32x16_bf16 {d}, {pw(ks,ct)}, {ab}, {c}")
                if ct == 1:
                    if ks + NB < 40:
                        k(f"ds_read_b128 {ab}, v6 offset:{(ks+NB)*1024}")
                    elif ks >= 37:
                        k(f"ds_read_b128 {ab}, v6 offset:{(ks+NB-40)*1024}")
                if ks >= 1:
                    credit += per
                    while fi < len(fill) and credit >= cost(fill[fi]) - 1e-9:
                        credit -= cost(fill[fi])
                        k(fill[fi])
                        fi += 1
            if ks == 36:
                while fi < len(fill):
                    k(fill[fi])
                    fi += 1
                k(f"s_add_u32 s{S_SLOT}, s{S_SLOT}, 40960")
                k(f"s_cmp_eq_u32 s{S_SLOT}, {3*40960}")
                k(f"s_cselect_b32 s{S_SLOT}, 0, s{S_SLOT}")
                k(f"v_add_u32 v6, s{S_SLOT}, v5")
                k(f"s_waitcnt vmcnt({nwait}) lgkmcnt(0)")
                if hook_top:
                    hook_top(k, kind)
                k("s_barrier")
                k(f"ds_read_b128 {v(P_AB+4*(35%NB),4)}, v6 offset:0")
                k(f"ds_read_b128 {v(P_AB+4*(36%NB),4)}, v6 offset:1024")
        k(f"s_mov_b32 s{S_ST}, s{S_CUR}")
        k(f"s_add_u32 s{S_CUR}, s{S_CUR}, s{S_OSTEP}")
        k(f"s_add_u32 s{S_I}, s{S_I}, 1")
        k(f"s_cmp_ge_u32 s{S_I}, s{s_nt}")
        k(f"s_cbranch_scc1 {Lend[half]} ; @carry")
    k(f"s_branch {Ltop} ; @carry")
    for half in range(2):
        k(f"{Lend[half]}: ; @carry")
        k("s_waitcnt lgkmcnt(0)")
        k("s_nop 7")
        k.extend(epilogue_ops(kind, P_ACC + 32 * half, S_ST, sc))
        if half == 0:
            k(f"s_branch {Ldone}")
    k(f"{Ldone}:")


def load_bias(k, s_wcp, st):
    make_srd(k, R_B, S_B1, 1728 * 2)
    k("v_lshrrev_b32 v2, 5, v1")
    k("v_lshlrev_b32 v2, 3, v2")
    k(f"s_lshl_b32 s{st}, s{s_wcp}, 7")
    for ct in range(2):
        for q in range(4):
            k(f"buffer_load_dwordx2 {v(P_T+2*(ct*4+q),2)}, v2, {s(R_B,4)}, s{st} offen offset:{ct*64+q*16}")
    for ct in range(2):
        for q in range(4):
            for d in range(2):
                src = P_T + 2 * (ct * 4 + q) + d
                dst = P_BIAS + 16 * ct + 4 * q + 2 * d
                k(f"v_lshlrev_b32 v{dst}, 16, v{src}")
                k(f"v_and_b32 v{dst+1}, 0xffff0000, v{src}")


def role_proj(k, s_cg, s_w, s_seg, s_nt, s_segstep, st=52, sc1=True, hook_pre=None, hook_top=None):
    S_WC, S_STR, S_COL, S_OB, S_OS, S_M = range(st, st + 6)
    st2 = st + 6
    k("v_and_b32 v1, 63, v0")
    k(f"s_lshl_b32 s{S_WC}, s{s_cg}, 2")
    k(f"s_add_u32 s{S_WC}, s{S_WC}, s{s_w}")
    k(f"s_lshr_b32 s{S_M}, s{s_cg}, 4")
    k(f"s_and_b32 s{S_WC}, s{S_WC}, 63")
    k(f"s_lshl_b32 s{S_COL}, s{S_WC}, 7")
    LQ, LK, LV, LH, LW, LDONE = [k.uid('Lp' + x) for x in 'QKVHWD']
    k(f"s_cmp_eq_u32 s{S_M}, 1")
    k(f"s_cbranch_scc1 {LK}")
    k(f"s_cmp_eq_u32 s{S_M}, 2")
    k(f"s_cbranch_scc1 {LV}")
    k(f"s_cmp_eq_u32 s{S_M}, 3")
    k(f"s_cbranch_scc1 {LH}")
    for lab, ptr, off in ((LQ, S_WQ, QC_OFF), (LK, S_WK, KC_OFF), (LV, S_WV, VC_OFF)):
        k(f"{lab}:")
        make_srd(k, R_A, ptr, 640 * 8192)
        k(f"s_mov_b32 s{S_STR}, 8192")
        k(f"s_mov_b32 s{S_OB}, {off:#x}")
        k(f"s_mov_b32 s{S_OS}, {32*8192}")
        k(f"s_branch {LW}")
    k(f"{LH}:")
    load_bias(k, S_WC, st2)
    make_srd(k, R_A, S_W1, 640 * 3456)
    k(f"s_mov_b32 s{S_STR}, 3456")
    k(f"s_mov_b32 s{S_OS}, {HC_SEG}")
    k(f"s_mov_b32 s{S_OB}, {HC_OFF:#x}")
    k(f"s_cmp_eq_u32 s{S_WC}, 27")
    k(f"s_cselect_b32 s{S_OB}, {WS_BYTES:#x}, s{S_OB}")
    k(f"{LW}:")
    k(f"s_lshl_b32 s{st2}, s{S_WC}, 12")
    k(f"s_add_u32 s{S_OB}, s{S_OB}, s{st2}")
    proj_load_weights(k, s_w, S_STR, S_COL, st2)
    if hook_pre:
        hook_pre(k)
    LMV, LMH = k.uid('LpmV'), k.uid('LpmH')
    k(f"s_cmp_eq_u32 s{S_M}, 2")
    k(f"s_cbranch_scc1 {LMV}")
    k(f"s_cmp_eq_u32 s{S_M}, 3")
    k(f"s_cbranch_scc1 {LMH}")
    proj_main(k, 'QK', s_w, s_seg, s_nt, s_segstep, S_OB, S_OS, st2, sc1, hook_top, 'q')
    k(f"s_branch {LDONE}")
    k(f"{LMV}:")
    proj_main(k, 'V', s_w, s_seg, s_nt, s_segstep, S_OB, S_OS, st2, sc1, hook_top, 'v')
    k(f"s_branch {LDONE}")
    k(f"{LMH}:")
    proj_main(k, 'H', s_w, s_seg, s_nt, s_segstep, S_OB, S_OS, st2, sc1, hook_top, 'h')
    k(f"{LDONE}:")
```

```python
from common import *

L_QK = 0
L_O = 4352
L_KT = 6400
L_MISC = 14592
L_W = 16384
QKS = 1088

vL16, vWB, vIDX, vQKW, vQKR, vKT, vOW, vPS, vRS, vPUB, vSMI = range(0, 11)
T0, T1, T2, T3, T4 = 11, 12, 13, 14, 15
AL, AR, ACC, WB = 16, 36, 56, 80
VT = 16
SM, S0, S1 = 24, 28, 32
F = 56
KT0, KT1 = 80, 36
W0, W1, ONES = 76, 78, 72
PT, PM = 52, 12
G = 16
OA = 72
RL = 36

SCALE_LOG2E = (128 ** -0.5) * 1.4426950408889634

LDS_UNITS = [('g', 2, 0), ('g', 2, 1), ('g', 2, 2), ('g', 2, 3), ('g', 2, 4), ('g', 0, 5), ('o', 2), ('o', 3), ('o', 4)]
ALL_UNITS = [('g', m, kk) for kk in range(10) for m in range(3)] + [('o', u) for u in range(5)]
REG_UNITS = [u for u in ALL_UNITS if u not in LDS_UNITS]
assert len(REG_UNITS) == 26
LOAD_ORDER = REG_UNITS + LDS_UNITS
LDS_SLOT = {u: (26 + i) % 9 for i, u in enumerate(LDS_UNITS)}


def unit_reg(u, t):
    i = REG_UNITS.index(u)
    return 96 + 16 * i + 8 * t


def lds_frag_reads(u, t, dst):
    off = LDS_SLOT[u] * 4096 + t * 2048
    return [f"ds_read_b128 {v(dst,4)}, v{vWB} offset:{off}",
            f"ds_read_b128 {v(dst+4,4)}, v{vWB} offset:{off+1024}"]


class RecS:
    def __init__(self, st):
        names = ['SIDE', 'H', 'W', 'STEP', 'PAR', 'ML', 'MR', 'MLW', 'MRW', 'PST', 'PLD', 'PUBV', 'KV', 'PUB', 'CNT',
                 'T', 'T2', 'T3', 'T4', 'RED', 'C', 'PZ', 'REG', 'LB', 'RB', 'TM', 'TM1', 'TM2', 'TM3']
        for i, n in enumerate(names):
            setattr(self, n, st + i)
        self.end = st + len(names)


def smf(k, acc, areg, b):
    k(f"v_smfmac_f32_16x16x64_bf16 {v(acc,4)}, {v(areg,4)}, {b}, v{vIDX}")


def rec_setup_vregs(k, S):
    k(f"v_and_b32 v{T0}, 63, v0")
    k(f"v_and_b32 v{T1}, 15, v{T0}")
    k(f"v_lshrrev_b32 v{T2}, 4, v{T0}")
    k(f"v_lshlrev_b32 v{vL16}, 4, v{T0}")
    k(f"s_mul_i32 s{S.REG}, s{S.W}, 36864")
    k(f"s_add_u32 s{S.REG}, s{S.REG}, {L_W}")
    k(f"v_add_u32 v{vWB}, s{S.REG}, v{vL16}")
    k(f"v_mov_b32 v{vIDX}, 0x4444")
    k(f"v_mov_b32 v{T3}, 0xeeee")
    k(f"v_cmp_lt_u32 vcc, 7, v{T1}")
    k(f"v_cndmask_b32 v{vIDX}, v{vIDX}, v{T3}, vcc")
    k(f"v_lshrrev_b32 v{T3}, 5, v{T0}")
    k(f"v_lshl_add_u32 v{T3}, v{T3}, 4, v{T1}")
    k(f"s_lshl_b32 s{S.T}, s{S.W}, 5")
    k(f"v_add_u32 v{T3}, s{S.T}, v{T3}")
    k(f"v_and_b32 v{T4}, 1, v{T2}")
    k(f"v_mul_u32_u24 v{vQKW}, {QKS}, v{T4}")
    k(f"v_lshl_add_u32 v{vQKW}, v{T3}, 3, v{vQKW}")
    if L_QK:
        k(f"v_add_u32 v{vQKW}, {L_QK}, v{vQKW}")
    k(f"v_lshlrev_b32 v{vPUB}, 4, v{T3}")
    k(f"v_lshl_add_u32 v{vPUB}, v{T4}, 3, v{vPUB}")
    k(f"v_lshrrev_b32 v{vPS}, 5, v{T0}")
    k(f"v_lshlrev_b32 v{vPS}, 14, v{vPS}")
    k(f"v_lshrrev_b32 v{T3}, 2, v{T1}")
    k(f"v_lshl_add_u32 v{vPS}, v{T3}, 12, v{vPS}")
    k(f"v_and_b32 v{T3}, 3, v{T1}")
    k(f"v_lshl_add_u32 v{vPS}, v{T3}, 5, v{vPS}")
    k(f"v_lshl_add_u32 v{vPS}, v{T4}, 4, v{vPS}")
    k(f"v_mul_u32_u24 v{vQKR}, {QKS}, v{T3}")
    k(f"v_lshrrev_b32 v{T3}, 5, v{T0}")
    k(f"v_lshl_add_u32 v{vQKR}, v{T3}, 7, v{vQKR}")
    k(f"v_lshl_add_u32 v{vQKR}, v{T4}, 5, v{vQKR}")
    k(f"v_bfe_u32 v{T3}, v{T0}, 2, 2")
    k(f"v_lshl_add_u32 v{vQKR}, v{T3}, 3, v{vQKR}")
    if L_QK:
        k(f"v_add_u32 v{vQKR}, {L_QK}, v{vQKR}")
    k(f"v_lshlrev_b32 v{vKT}, 9, v{T2}")
    k(f"v_lshl_add_u32 v{vKT}, v{T1}, 4, v{vKT}")
    k(f"v_lshrrev_b32 v{T3}, 5, v{T0}")
    k(f"v_lshlrev_b32 v{vOW}, 7, v{T3}")
    k(f"v_lshl_add_u32 v{vOW}, v{T1}, 4, v{vOW}")
    k(f"v_lshl_add_u32 v{vOW}, v{T4}, 3, v{vOW}")
    k(f"s_lshl_b32 s{S.T}, s{S.W}, 9")
    k(f"s_add_u32 s{S.T}, s{S.T}, {L_O}")
    k(f"v_add_u32 v{vOW}, s{S.T}, v{vOW}")
    k(f"v_mov_b32 v{vSMI}, 0")
    k(f"v_mov_b32 v{T3}, 0xf149f2ca")
    k(f"v_cmp_gt_u32 vcc, 32, v{T0}")
    k(f"v_cndmask_b32 v{vSMI}, v{vSMI}, v{T3}, vcc")
    Lw3, Lj = k.uid('Lrs3'), k.uid('Lrsj')
    k(f"s_cmp_eq_u32 s{S.W}, 3")
    k(f"s_cbranch_scc1 {Lw3}")
    k(f"v_and_b32 v{vRS}, 1, v{T0}")
    k(f"v_lshlrev_b32 v{vRS}, 6, v{vRS}")
    k(f"v_lshrrev_b32 v{T3}, 5, v{T0}")
    k(f"v_lshl_add_u32 v{vRS}, v{T3}, 5, v{vRS}")
    k(f"v_lshl_add_u32 v{vRS}, v{T4}, 4, v{vRS}")
    k(f"s_branch {Lj}")
    k(f"{Lw3}:")
    k(f"v_lshrrev_b32 v{T3}, 5, v{T0}")
    k(f"v_lshlrev_b32 v{vRS}, 9, v{T3}")
    k(f"v_bfe_u32 v{T3}, v{T0}, 3, 1")
    k(f"v_lshl_add_u32 v{vRS}, v{T3}, 8, v{vRS}")
    k(f"v_lshl_add_u32 v{vRS}, v{T4}, 7, v{vRS}")
    k(f"v_and_b32 v{T3}, 7, v{T0}")
    k(f"v_lshl_add_u32 v{vRS}, v{T3}, 4, v{vRS}")
    k(f"{Lj}:")


def rec_load_weights(k, S):
    R_WO = 96
    make_srd(k, R_A, S_WQ, 640 * 8192)
    make_srd(k, R_B, S_WK, 640 * 8192)
    make_srd(k, R_C, S_WV, 640 * 8192)
    make_srd(k, R_WO, S_WO, 32 * 163840)
    srd = {0: R_A, 1: R_B, 2: R_C}
    lane, row, vG, vO, vO4, vTR, t = 16, 17, 18, 19, 20, 21, 22
    k(f"v_lshrrev_b32 v{lane}, 4, v{vL16}")
    k(f"v_bfe_u32 v{row}, v{lane}, 2, 1")
    k(f"v_bfe_u32 v{t}, v{lane}, 3, 1")
    k(f"v_lshl_add_u32 v{row}, v{t}, 2, v{row}")
    k(f"v_bfe_u32 v{t}, v{lane}, 4, 1")
    k(f"v_lshl_add_u32 v{row}, v{t}, 3, v{row}")
    k(f"v_bfe_u32 v{t}, v{lane}, 5, 1")
    k(f"v_lshl_add_u32 v{row}, v{t}, 1, v{row}")
    k(f"v_and_b32 v{t}, 3, v{lane}")
    k(f"v_lshlrev_b32 v{vG}, 13, v{row}")
    k(f"v_lshl_add_u32 v{vG}, v{t}, 4, v{vG}")
    k(f"v_mul_u32_u24 v{vO}, 1280, v{row}")
    k(f"v_mov_b32 v{vO4}, v{vO}")
    k(f"v_lshl_add_u32 v{vO}, v{t}, 4, v{vO}")
    k(f"v_and_b32 v{t}, 1, v{lane}")
    k(f"v_lshl_add_u32 v{vO4}, v{t}, 4, v{vO4}")
    k(f"v_bfe_u32 v{t}, v{lane}, 1, 1")
    k(f"v_mul_u32_u24 v{t}, {64*1280}, v{t}")
    k(f"v_add_u32 v{vO4}, v{vO4}, v{t}")
    k(f"v_bfe_u32 v{vTR}, v{lane}, 5, 1")
    k(f"v_lshlrev_b32 v{vTR}, 10, v{vTR}")
    k(f"v_bfe_u32 v{t}, v{lane}, 3, 1")
    k(f"v_lshl_add_u32 v{vTR}, v{t}, 8, v{vTR}")
    k(f"v_bfe_u32 v{t}, v{lane}, 4, 1")
    k(f"v_lshl_add_u32 v{vTR}, v{t}, 7, v{vTR}")
    k(f"v_bfe_u32 v{t}, v{lane}, 2, 1")
    k(f"v_lshl_add_u32 v{vTR}, v{t}, 6, v{vTR}")
    k(f"v_and_b32 v{t}, 3, v{lane}")
    k(f"v_lshl_add_u32 v{vTR}, v{t}, 3, v{vTR}")
    k(f"v_add_u32 v{vTR}, s{S.REG}, v{vTR}")
    k(f"s_lshl_b32 s{S.T}, s{S.H}, 8")
    k(f"s_lshl_b32 s{S.T2}, s{S.W}, 6")
    k(f"s_add_u32 s{S.T}, s{S.T}, s{S.T2}")
    k(f"s_mul_i32 s{S.LB}, s{S.SIDE}, {320*8192}")
    k(f"s_sub_u32 s{S.RB}, {320*8192}, s{S.LB}")
    k(f"s_add_u32 s{S.LB}, s{S.LB}, s{S.T}")
    k(f"s_add_u32 s{S.RB}, s{S.RB}, s{S.T}")
    k(f"s_mul_i32 s{S.T3}, s{S.H}, 163840")
    k(f"s_mul_i32 s{S.T}, s{S.SIDE}, 640")
    k(f"s_add_u32 s{S.T3}, s{S.T3}, s{S.T}")
    k(f"s_mul_i32 s{S.T}, s{S.W}, 160")
    k(f"s_add_u32 s{S.T3}, s{S.T3}, s{S.T}")

    def issue(n):
        u = LOAD_ORDER[n]
        slot = n % 9
        for i in range(4):
            k(f"s_add_u32 m0, s{S.REG}, {slot*4096 + i*1024}")
            if u[0] == 'g':
                _, m, kk = u
                base = S.LB if kk < 5 else S.RB
                k(f"s_add_u32 s{S.T}, s{base}, {((kk%5)*64 + 16*i)*8192}")
                k(f"buffer_load_dwordx4 v{vG}, {s(srd[m],4)}, s{S.T} offen lds")
            else:
                uu = u[1]
                if uu < 4:
                    k(f"s_add_u32 s{S.T}, s{S.T3}, {((uu%2)*64 + 16*i)*1280 + (uu//2)*64}")
                    k(f"buffer_load_dwordx4 v{vO}, {s(R_WO,4)}, s{S.T} offen lds")
                else:
                    k(f"s_add_u32 s{S.T}, s{S.T3}, {16*i*1280 + 128}")
                    k(f"buffer_load_dwordx4 v{vO4}, {s(R_WO,4)}, s{S.T} offen lds")

    for n in range(9):
        issue(n)
    for n in range(35):
        u = LOAD_ORDER[n]
        slot = n % 9
        out = min(35, n + 9) - (n + 1)
        k(f"s_waitcnt vmcnt({4*out})")
        for t_ in range(2):
            base = unit_reg(u, t_) if n < 26 else 24 + 8 * t_
            for jq in range(4):
                off = slot * 4096 + (32 * (jq // 2) + 8 * (jq % 2)) * 64 + t_ * 32
                k(f"ds_read_b64_tr_b16 {wreg(base+2*jq,2)}, v{vTR} offset:{off}")
        k("s_waitcnt lgkmcnt(0)")
        if n < 26:
            issue(n + 9)
        else:
            for q in range(4):
                k(f"ds_write_b128 v{vWB}, {v(24+4*q,4)} offset:{slot*4096 + q*1024}")
            k("s_waitcnt lgkmcnt(0)")


def poll_mem(k, S, dst, s_off, Lto, first_issue=True, tag='a'):
    Lp, Lc = k.uid('Lpm' + tag), k.uid('Lpc' + tag)
    if not first_issue:
        k(f"s_branch {Lc} ; @carry")
    k(f"{Lp}: ; @carry")
    k(f"s_sub_u32 s{S.CNT}, s{S.CNT}, 1")
    k(f"s_cbranch_scc1 {Lto} ; @carry")
    issue_mem(k, dst, s_off, S)
    k(f"{Lc}: ; @carry")
    k("s_waitcnt vmcnt(0)")
    k(f"v_max3_u32 v{T0}, v{dst}, v{dst+2}, v{dst+4}")
    k(f"v_max3_u32 v{T1}, v{dst+6}, v{dst+8}, v{dst+10}")
    k(f"v_max3_u32 v{T0}, v{T0}, v{dst+12}, v{dst+14}")
    k(f"v_max3_u32 v{T1}, v{T1}, v{dst+16}, v{dst+18}")
    k(f"v_max_u32 v{T0}, v{T0}, v{T1}")
    k(f"v_cmp_eq_u32 vcc, -1, v{T0}")
    k(f"s_cbranch_vccnz {Lp} ; @carry")


def issue_mem(k, dst, s_off, S):
    for i in range(4):
        k(f"buffer_load_dwordx4 {v(dst+4*i,4)}, v{vL16}, {s(R_WS,4)}, s{s_off} offen offset:{1024*i} sc1")
    k(f"s_add_u32 s{S.T4}, s{s_off}, 4096")
    k(f"buffer_load_dwordx4 {v(dst+16,4)}, v{vL16}, {s(R_WS,4)}, s{S.T4} offen sc1")


def pair_sum(k, x, y):
    for r in range(4):
        k(f"v_permlane32_swap_b32 v{x+r}, v{y+r}")
    for r in range(4):
        k(f"v_add_f32 v{x+r}, v{x+r}, v{y+r}")


def stamp(k, S, idx, on):
    if not on:
        return
    k(f"s_memtime s[{S.TM}:{S.TM+1}]" if S.TM % 2 == 0 else f"s_memtime s[{S.TM+1}:{S.TM+2}]")


def role_rec(k, S, nsteps=64, hook_kv=None, hook_pub=None, prof=None):
    Lto = k.uid('Lrec_timeout')
    Lend = k.uid('Lrec_end')
    rec_setup_vregs(k, S)
    k(f"s_mov_b32 s{S.CNT}, 0x80000")
    k(f"s_lshl_b32 s{S.T}, s{S.SIDE}, 13")
    k(f"s_add_u32 s{S.ML}, s{S.T}, {MEML_OFF}")
    k(f"s_sub_u32 s{S.MR}, {MEMR_OFF + 8192}, s{S.T}")
    k(f"s_lshl_b32 s{S.T2}, s{S.W}, 5")
    k(f"s_add_u32 s{S.T2}, s{S.T2}, s{S.H}")
    k(f"s_cmp_lt_u32 s{S.T2}, 80")
    k(f"s_cselect_b32 s{S.RED}, 1, 0")
    k(f"s_mul_i32 s{S.T3}, s{S.SIDE}, {80*4096}")
    k(f"s_add_u32 s{S.T3}, s{S.T3}, {PART_OFF}")
    k(f"s_lshl_b32 s{S.PLD}, s{S.T2}, 12")
    k(f"s_add_u32 s{S.PLD}, s{S.PLD}, s{S.T3}")
    k(f"s_lshl_b32 s{S.PST}, s{S.H}, 7")
    k(f"s_add_u32 s{S.PST}, s{S.PST}, s{S.T3}")
    k(f"s_mul_i32 s{S.T3}, s{S.W}, {5*16384}")
    k(f"s_add_u32 s{S.PST}, s{S.PST}, s{S.T3}")
    k(f"s_lshr_b32 s{S.T3}, s{S.T2}, 1")
    k(f"s_lshl_b32 s{S.T3}, s{S.T3}, 7")
    k(f"s_and_b32 s{S.T2}, s{S.T2}, 1")
    k(f"s_lshl_b32 s{S.T2}, s{S.T2}, 3")
    k(f"s_add_u32 s{S.T3}, s{S.T3}, s{S.T2}")
    k(f"s_add_u32 s{S.T3}, s{S.T3}, s{S.T}")
    k(f"s_add_u32 s{S.MLW}, s{S.T3}, {MEML_OFF + 16384}")
    k(f"s_add_u32 s{S.MRW}, s{S.T3}, {MEMR_OFF + 16384}")
    k(f"s_lshl_b32 s{S.PZ}, s{S.H}, 8")
    k(f"s_add_u32 s{S.PZ}, s{S.PZ}, s{S.T}")
    k(f"s_lshl_b32 s{S.KV}, s{S.H}, 13")
    k(f"s_lshl_b32 s{S.T2}, s{S.H}, 11")
    k(f"s_add_u32 s{S.PUB}, s{S.T2}, {KM_OFF}")
    k(f"s_add_u32 s{S.PUBV}, s{S.T2}, {VM_OFF}")
    k(f"s_cmp_eq_u32 s{S.SIDE}, 0")
    k(f"s_cselect_b32 s{S.PUB}, s{S.PUB}, {WS_BYTES:#x}")
    k(f"s_cselect_b32 s{S.PUBV}, {WS_BYTES:#x}, s{S.PUBV}")
    k(f"s_mov_b32 s{S.C}, {SCALE_LOG2E!r}")
    k(f"s_mov_b32 s{S.STEP}, 0")
    k(f"s_mov_b32 s{S.PAR}, 1")
    for r in range(4):
        k(f"v_mov_b32 v{16+r}, 0")
    k(f"buffer_store_dwordx4 {v(16,4)}, v{vPS}, {s(R_WS,4)}, s{S.PST} offen")
    k(f"s_add_u32 s{S.T2}, s{S.PST}, {2*16384}")
    k(f"buffer_store_dwordx4 {v(16,4)}, v{vPS}, {s(R_WS,4)}, s{S.T2} offen")
    k(f"s_add_u32 s{S.T2}, s{S.PST}, {3*16384}")
    k(f"buffer_store_dwordx4 {v(16,4)}, v{vPS}, {s(R_WS,4)}, s{S.T2} offen")
    Lni = k.uid('Lnoinit')
    k(f"s_cmp_lg_u32 s{S.W}, 3")
    k(f"s_cbranch_scc1 {Lni}")
    k(f"s_cmp_ge_u32 s{S.H}, 20")
    k(f"s_cbranch_scc1 {Lni}")
    make_srd(k, R_A, S_MEM0, 8 * 1280)
    k("s_mov_b64 exec, 0xffff")
    k(f"v_bfe_u32 v20, v{vL16}, 4, 3")
    k("v_mul_u32_u24 v20, 1280, v20")
    k(f"v_bfe_u32 v21, v{vL16}, 7, 1")
    k("v_lshl_add_u32 v20, v21, 4, v20")
    k(f"s_mul_i32 s{S.T2}, s{S.SIDE}, 640")
    k(f"s_lshl_b32 s{S.T3}, s{S.H}, 5")
    k(f"s_add_u32 s{S.T2}, s{S.T2}, s{S.T3}")
    k(f"buffer_load_dwordx4 {v(24,4)}, v20, {s(R_A,4)}, s{S.T2} offen")
    for r in range(4):
        k(f"v_mov_b32 v{28+r}, -1")
    for r in range(4):
        k(f"v_min_u32 v{24+r}, -2, v{24+r}")
    for slot in range(3):
        src = 24 if slot == 0 else 28
        k(f"s_add_u32 s{S.T2}, s{S.PZ}, {MEML_OFF + slot*16384}")
        k(f"buffer_store_dwordx4 {v(src,4)}, v{vL16}, {s(R_WS,4)}, s{S.T2} offen")
        k(f"s_add_u32 s{S.T2}, s{S.PZ}, {MEMR_OFF + slot*16384}")
        k(f"buffer_store_dwordx4 {v(src,4)}, v{vL16}, {s(R_WS,4)}, s{S.T2} offen sc1")
    k("s_mov_b64 exec, -1")
    k(f"{Lni}:")
    k(f"s_add_u32 s{S.PZ}, s{S.PZ}, {3*16384}")
    k("s_waitcnt vmcnt(0)")
    k("s_barrier")
    Lna = k.uid('Lnoarr')
    k(f"s_cmp_lg_u32 s{S.W}, 0")
    k(f"s_cbranch_scc1 {Lna}")
    k("s_mov_b64 exec, 1")
    k("v_mov_b32 v16, 1")
    k("v_mov_b32 v17, 64")
    k(f"buffer_atomic_add v16, v17, {s(R_DBG,4)}, 0 offen sc1")
    k("s_mov_b64 exec, -1")
    k(f"{Lna}:")
    rec_load_weights(k, S)

    def ktok_dma():
        k(f"s_add_u32 s{S.T}, s{S.KV}, {KC_OFF}")
        k(f"s_mov_b32 m0, {L_KT}")
        for i in range(8):
            if i == 4:
                k(f"s_add_u32 s{S.T}, s{S.T}, 4096")
                k(f"s_mov_b32 m0, {L_KT + 4096}")
            k(f"buffer_load_dwordx4 v{vRS}, {s(R_WS,4)}, s{S.T} offen offset:{(i%4)*1024} sc1 lds")

    Lk0 = k.uid('Lk0')
    k(f"s_cmp_lg_u32 s{S.W}, 3")
    k(f"s_cbranch_scc1 {Lk0}")
    if hook_kv:
        hook_kv(k, S, 0, Lto)
    ktok_dma()
    k(f"{Lk0}:")
    Lrv = k.uid('Lrv')
    k("v_mov_b32 v17, 64")
    k(f"{Lrv}:")
    k(f"s_sub_u32 s{S.CNT}, s{S.CNT}, 1")
    k(f"s_cbranch_scc1 {Lto}")
    k(f"buffer_load_dword v16, v17, {s(R_DBG,4)}, 0 offen sc1")
    k("s_waitcnt vmcnt(0)")
    k("v_cmp_gt_u32 vcc, 64, v16")
    k(f"s_cbranch_vccnz {Lrv}")
    for r in range(24):
        k(f"v_mov_b32 v{ACC+r}, 0")
    k.extend(lds_frag_reads(('g', 2, 0), 0, WB))
    k.extend(lds_frag_reads(('g', 2, 0), 1, WB + 8))

    Ltop = k.uid('Lstep')
    k(".p2align 6")
    k(f"{Ltop}: ; @carry")
    if prof:
        prof(k, S, 0)
    poll_mem(k, S, AL, S.ML, Lto, True, 'l')
    if prof:
        prof(k, S, 1)
    issue_mem(k, AR, S.MR, S)

    def bfrag(u, t):
        if u in LDS_UNITS:
            return v(WB + 8 * t, 8)
        return wreg(unit_reg(u, t), 8)

    for kk in range(5):
        for m in range(3):
            for t in range(2):
                smf(k, ACC + 8 * m + 4 * t, AL + 4 * kk, bfrag(('g', m, kk), t))
                if m == 2:
                    nxt = ('g', 2, kk + 1) if kk < 4 else ('g', 0, 5)
                    k.extend(lds_frag_reads(nxt, t, WB + 8 * t))
    if prof:
        prof(k, S, 2)
    poll_mem(k, S, AR, S.MR, Lto, False, 'r')
    if prof:
        prof(k, S, 3)
    k(f"s_lshl_b32 s{S.T}, s{S.W}, 11")
    k(f"s_add_u32 s{S.T}, s{S.T}, s{S.KV}")
    k(f"s_add_u32 s{S.T}, s{S.T}, {VC_OFF}")
    for t in range(2):
        k(f"buffer_load_dwordx4 {v(VT+4*t,4)}, v{vKT}, {s(R_WS,4)}, s{S.T} offen offset:{256*t} sc1")
    for kk in range(5, 10):
        for m in range(2):
            for t in range(2):
                smf(k, ACC + 8 * m + 4 * t, AR + 4 * (kk - 5), bfrag(('g', m, kk), t))
        if kk == 5:
            pass
    smf(k, ACC + 16, AR, bfrag(('g', 2, 5), 0))
    smf(k, ACC + 20, AR, bfrag(('g', 2, 5), 1))
    pair_sum(k, ACC, ACC + 4)
    k(f"v_cvt_pk_bf16_f32 v{ACC+4}, v{ACC}, v{ACC+1}")
    k(f"v_cvt_pk_bf16_f32 v{ACC+5}, v{ACC+2}, v{ACC+3}")
    k(f"ds_write_b64 v{vQKW}, {v(ACC+4,2)}")
    pair_sum(k, ACC + 8, ACC + 12)
    k(f"v_cvt_pk_bf16_f32 v{ACC+12}, v{ACC+8}, v{ACC+9}")
    k(f"v_cvt_pk_bf16_f32 v{ACC+13}, v{ACC+10}, v{ACC+11}")
    k(f"ds_write_b64 v{vQKW}, {v(ACC+12,2)} offset:{2*QKS}")
    k(f"buffer_store_dwordx2 {v(ACC+12,2)}, v{vPUB}, {s(R_WS,4)}, s{S.PUB} offen sc1")
    k("s_waitcnt lgkmcnt(0)")
    k("s_barrier")
    if prof:
        prof(k, S, 4)
    for kap in range(4):
        for jq in range(2):
            k(f"ds_read_b64_tr_b16 {v(F+4*kap+2*jq,2)}, v{vQKR} offset:{256*kap+64*jq}")
    for kap in range(4):
        k(f"ds_read_b128 {v(KT0+4*kap,4)}, v{vKT} offset:{L_KT + 2048*kap}")
    k(f"ds_read_b128 {v(KT1,4)}, v{vKT} offset:{L_KT + 256}")
    for kk in range(6, 10):
        for t in range(2):
            smf(k, ACC + 16 + 4 * t, AR + 4 * (kk - 5), bfrag(('g', 2, kk), t))
        if kk < 9:
            kap = kk - 5
            k(f"ds_read_b128 {v(KT1+4*kap,4)}, v{vKT} offset:{L_KT + 2048*kap + 256}")
    for r in range(4):
        k(f"v_mov_b32 v{SM+r}, v{vSMI}")
    for kap in range(4):
        k(f"v_mfma_f32_16x16x32_bf16 {v(SM,4)}, {v(F+4*kap,4)}, {v(F+4*kap,4)}, {v(SM,4)}")
    for kap in range(4):
        k(f"v_mfma_f32_16x16x32_bf16 {v(S0,4)}, {v(KT0+4*kap,4)}, {v(F+4*kap,4)}, {'0' if kap == 0 else v(S0,4)}")
    pair_sum(k, ACC + 16, ACC + 20)
    for kap in range(4):
        k(f"v_mfma_f32_16x16x32_bf16 {v(S1,4)}, {v(KT1+4*kap,4)}, {v(F+4*kap,4)}, {'0' if kap == 0 else v(S1,4)}")
    k(f"v_cvt_pk_bf16_f32 v{W0}, v{ACC+16}, v{ACC+17}")
    k(f"v_cvt_pk_bf16_f32 v{W0+1}, v{ACC+18}, v{ACC+19}")
    k(f"v_cvt_pk_bf16_f32 v{W1}, v{ACC+16}, v{ACC+17}")
    k(f"v_cvt_pk_bf16_f32 v{W1+1}, v{ACC+18}, v{ACC+19}")
    k(f"buffer_store_dwordx2 {v(W1,2)}, v{vPUB}, {s(R_WS,4)}, s{S.PUBV} offen sc1")
    k(f"s_cmp_eq_u32 s{S.STEP}, {nsteps-1}")
    k(f"s_cbranch_scc1 {Lend} ; @carry")
    k(f"v_permlane32_swap_b32 v{W0}, v{W1}")
    k(f"v_permlane32_swap_b32 v{W0+1}, v{W1+1}")
    for r in range(4):
        k(f"v_mov_b32 v{ONES+r}, 0x3f803f80")
    k.extend(lds_frag_reads(('o', 2), 0, 56))
    k.extend(lds_frag_reads(('o', 2), 1, 64))
    k.extend(lds_frag_reads(('o', 3), 0, 80))
    k.extend(lds_frag_reads(('o', 3), 1, 88))
    k.extend(lds_frag_reads(('o', 4), 0, 36))
    k.extend(lds_frag_reads(('o', 4), 1, 44))
    if prof:
        prof(k, S, 5)
    k(f"v_max3_f32 v{T0}, v{SM}, v{SM+1}, v{SM+2}")
    k(f"v_max3_f32 v{T0}, v{T0}, v{SM+3}, v{S0}")
    k(f"v_max3_f32 v{T0}, v{T0}, v{S0+1}, v{S0+2}")
    k(f"v_max3_f32 v{T3}, v{S0+3}, v{S1}, v{S1+1}")
    k(f"v_max3_f32 v{T3}, v{T3}, v{S1+2}, v{S1+3}")
    k(f"v_max_f32 v{T0}, v{T0}, v{T3}")
    k(f"v_mov_b32 v{T3}, v{T0}")
    k(f"v_permlane16_swap_b32 v{T0}, v{T3}")
    k(f"v_max_f32 v{T0}, v{T0}, v{T3}")
    k(f"v_mov_b32 v{T3}, v{T0}")
    k(f"v_permlane32_swap_b32 v{T0}, v{T3}")
    k(f"v_max_f32 v{T0}, v{T0}, v{T3}")
    k(f"v_mul_f32 v{T0}, s{S.C}, v{T0}")
    for r in range(12):
        k(f"v_fma_f32 v{SM+r}, v{SM+r}, s{S.C}, -v{T0}")
    for r in range(12):
        k(f"v_exp_f32 v{SM+r}, v{SM+r}")
    k(f"v_cvt_pk_bf16_f32 v{PM}, v{SM}, v{SM+1}")
    k(f"v_cvt_pk_bf16_f32 v{PM+1}, v{SM+2}, v{SM+3}")
    for j in range(4):
        k(f"v_cvt_pk_bf16_f32 v{PT+j}, v{S0+2*j}, v{S0+2*j+1}")
    LS, O0, O1 = SM, S0, S1
    k(f"v_mfma_f32_16x16x16_bf16 {v(LS,4)}, {v(ONES,2)}, {v(PM,2)}, 0")
    k(f"v_mfma_f32_16x16x16_bf16 {v(O0,4)}, {v(W0,2)}, {v(PM,2)}, 0")
    k(f"v_mfma_f32_16x16x16_bf16 {v(O1,4)}, {v(W1,2)}, {v(PM,2)}, 0")
    k(f"v_mfma_f32_16x16x32_bf16 {v(LS,4)}, {v(ONES,4)}, {v(PT,4)}, {v(LS,4)}")
    k(f"v_mfma_f32_16x16x32_bf16 {v(O0,4)}, {v(VT,4)}, {v(PT,4)}, {v(O0,4)}")
    k(f"v_mfma_f32_16x16x32_bf16 {v(O1,4)}, {v(VT+4,4)}, {v(PT,4)}, {v(O1,4)}")
    for r in range(8):
        k(f"v_mov_b32 v{G+r}, 0")
    k(f"v_rcp_f32 v{T0}, v{LS}")
    for r in range(4):
        k(f"v_mul_f32 v{O0+r}, v{O0+r}, v{T0}")
    k(f"v_cvt_pk_bf16_f32 v{PT}, v{O0}, v{O0+1}")
    k(f"v_cvt_pk_bf16_f32 v{PT+1}, v{O0+2}, v{O0+3}")
    for r in range(4):
        k(f"v_mul_f32 v{O1+r}, v{O1+r}, v{T0}")
    k(f"v_cvt_pk_bf16_f32 v{PT+2}, v{O1}, v{O1+1}")
    k(f"v_cvt_pk_bf16_f32 v{PT+3}, v{O1+2}, v{O1+3}")
    k("s_mov_b32 exec_lo, 0x00ff00ff")
    k("s_mov_b32 exec_hi, 0x00ff00ff")
    k(f"ds_write2_b64 v{vOW}, {v(PT,2)}, {v(PT+2,2)} offset0:0 offset1:32")
    k("s_mov_b64 exec, -1")
    for r in range(8, 20):
        k(f"v_mov_b32 v{G+r}, 0")
    k("s_waitcnt lgkmcnt(0)")
    k("s_barrier")
    if prof:
        prof(k, S, 6)
    k(f"ds_read_b128 {v(OA,4)}, v{vL16} offset:{L_O}")
    k(f"ds_read_b128 {v(OA+4,4)}, v{vL16} offset:{L_O+1024}")

    def ofrag(tile, k2):
        if tile < 2:
            return wreg(unit_reg(('o', k2), tile), 8)
        if tile < 4:
            return v((56 if k2 == 0 else 80) + 8 * (tile - 2), 8)
        return v(36 + 8 * k2, 8)

    for tile in range(5):
        for k2 in range(2):
            smf(k, G + 4 * tile, OA + 4 * k2, ofrag(tile, k2))
    pair_sum(k, G, G + 4)
    k(f"v_and_or_b32 v{G}, v{G}, -2, s{S.PAR}")
    k(f"buffer_store_dwordx4 {v(G,4)}, v{vPS}, {s(R_WS,4)}, s{S.PST} offen")
    pair_sum(k, G + 8, G + 12)
    k(f"v_and_or_b32 v{G+8}, v{G+8}, -2, s{S.PAR}")
    k(f"s_add_u32 s{S.T}, s{S.PST}, {2*16384}")
    k(f"buffer_store_dwordx4 {v(G+8,4)}, v{vPS}, {s(R_WS,4)}, s{S.T} offen")
    pair_sum(k, G + 16, G + 4)
    k(f"v_and_or_b32 v{G+16}, v{G+16}, -2, s{S.PAR}")
    k(f"s_add_u32 s{S.T}, s{S.PST}, {4*16384}")
    k("s_mov_b32 exec_hi, 0")
    k(f"buffer_store_dwordx4 {v(G+16,4)}, v{vPS}, {s(R_WS,4)}, s{S.T} offen")
    k("s_mov_b32 exec_hi, -1")
    if prof:
        prof(k, S, 7)
    k(f"s_add_u32 s{S.KV}, s{S.KV}, {32*8192}")
    k(f"s_add_u32 s{S.PUB}, s{S.PUB}, {32*2048}")
    k(f"s_add_u32 s{S.PUBV}, s{S.PUBV}, {32*2048}")
    k(f"s_add_u32 s{S.ML}, s{S.ML}, 16384")
    k(f"s_add_u32 s{S.MR}, s{S.MR}, 16384")
    k(f"s_add_u32 s{S.STEP}, s{S.STEP}, 1")
    Lnr, Lnx = k.uid('Lnored'), k.uid('Lnext')
    k(f"s_cmp_eq_u32 s{S.RED}, 0")
    k(f"s_cbranch_scc1 {Lnr}")
    Lrp = k.uid('Lrp')
    k(f"{Lrp}:")
    k(f"s_sub_u32 s{S.CNT}, s{S.CNT}, 1")
    k(f"s_cbranch_scc1 {Lto}")
    for i in range(4):
        k(f"buffer_load_dwordx4 {v(RL+4*i,4)}, v{vL16}, {s(R_WS,4)}, s{S.PLD} offen offset:{1024*i} sc1")
    k("s_waitcnt vmcnt(0)")
    k(f"v_bitop3_b32 v{T0}, v{RL}, v{RL+4}, s{S.PAR} bitop3:0x7e")
    k(f"v_bitop3_b32 v{T1}, v{RL+8}, v{RL+12}, s{S.PAR} bitop3:0x7e")
    k(f"v_bitop3_b32 v{T0}, v{T0}, v{T1}, 1 bitop3:0xa8")
    k(f"v_cmp_ne_u32 vcc, 0, v{T0}")
    k(f"s_cbranch_vccnz {Lrp}")
    if prof:
        prof(k, S, 8)
    for j in range(2):
        k(f"v_pk_add_f32 {v(RL+2*j,2)}, {v(RL+2*j,2)}, {v(RL+4+2*j,2)}")
        k(f"v_pk_add_f32 {v(RL+8+2*j,2)}, {v(RL+8+2*j,2)}, {v(RL+12+2*j,2)}")
    for j in range(2):
        k(f"v_pk_add_f32 {v(RL+2*j,2)}, {v(RL+2*j,2)}, {v(RL+8+2*j,2)}")
    k(f"v_permlane32_swap_b32 v{RL}, v{RL+2}")
    k(f"v_permlane32_swap_b32 v{RL+1}, v{RL+3}")
    k(f"v_pk_add_f32 {v(RL,2)}, {v(RL,2)}, {v(RL+2,2)}")
    k(f"v_permlane16_swap_b32 v{RL}, v{RL+1}")
    k(f"v_add_f32 v{RL}, v{RL}, v{RL+1}")
    k(f"v_add_f32_dpp v{RL}, v{RL}, v{RL} row_ror:8 row_mask:0xf bank_mask:0xf")
    k(f"v_mov_b32_dpp v{RL+1}, v{RL} quad_perm:[2,3,0,1] row_mask:0xf bank_mask:0xf")
    k(f"v_cvt_pk_bf16_f32 v{RL+2}, v{RL}, v{RL+1}")
    k(f"v_min_u32 v{RL+2}, -2, v{RL+2}")
    k(f"v_mov_b32_dpp v{RL+3}, v{RL+2} row_shl:4 row_mask:0xf bank_mask:0xf")
    k("s_mov_b32 exec_lo, 0x00030003")
    k("s_mov_b32 exec_hi, 0x00030003")
    k(f"buffer_store_dwordx2 {v(RL+2,2)}, v{vRS}, {s(R_WS,4)}, s{S.MRW} offen sc1")
    k(f"buffer_store_dwordx2 {v(RL+2,2)}, v{vRS}, {s(R_WS,4)}, s{S.MLW} offen")
    k("s_mov_b64 exec, -1")
    k(f"s_branch {Lnx}")
    k(f"{Lnr}:")
    k(f"s_cmp_lg_u32 s{S.W}, 3")
    k(f"s_cbranch_scc1 {Lnx}")
    if hook_kv:
        hook_kv(k, S, 1, Lto)
    ktok_dma()
    Lnp = k.uid('Lnp')
    k(f"s_cmp_ge_u32 s{S.H}, 20")
    k(f"s_cbranch_scc1 {Lnx}")
    for r in range(4):
        k(f"v_mov_b32 v{RL+r}, -1")
    k("s_mov_b64 exec, 0xffff")
    k(f"s_add_u32 s{S.T}, s{S.PZ}, {MEML_OFF}")
    k(f"buffer_store_dwordx4 {v(RL,4)}, v{vL16}, {s(R_WS,4)}, s{S.T} offen")
    k(f"s_add_u32 s{S.T}, s{S.PZ}, {MEMR_OFF}")
    k(f"buffer_store_dwordx4 {v(RL,4)}, v{vL16}, {s(R_WS,4)}, s{S.T} offen sc1")
    k("s_mov_b64 exec, -1")
    k(f"{Lnx}:")
    k(f"s_add_u32 s{S.PZ}, s{S.PZ}, 16384")
    k(f"s_add_u32 s{S.MLW}, s{S.MLW}, 16384")
    k(f"s_add_u32 s{S.MRW}, s{S.MRW}, 16384")
    k(f"s_xor_b32 s{S.PAR}, s{S.PAR}, 1")
    for r in range(24):
        k(f"v_mov_b32 v{ACC+r}, 0")
    k.extend(lds_frag_reads(('g', 2, 0), 0, WB))
    k.extend(lds_frag_reads(('g', 2, 0), 1, WB + 8))
    k(f"s_branch {Ltop} ; @carry")
    k(f"{Lto}: ; @carry")
    k("s_mov_b64 exec, 1")
    k("s_waitcnt vmcnt(0) lgkmcnt(0)")
    k(f"v_mov_b32 v16, s{S.STEP}")
    k("v_add_u32 v16, 0x1000, v16")
    k("v_mov_b32 v17, 128")
    k(f"buffer_store_dword v16, v17, {s(R_DBG,4)}, 0 offen sc1")
    k("s_mov_b64 exec, -1")
    k(f"{Lend}: ; @carry")
    k("s_waitcnt vmcnt(0) lgkmcnt(0)")


def get_rank(k, s_xcc, s_rank, s_w, lds_off=L_MISC):
    k(f"s_getreg_b32 s{s_xcc}, hwreg(HW_REG_XCC_ID)")
    k(f"s_and_b32 s{s_xcc}, s{s_xcc}, 7")
    Ls = k.uid('Lrk')
    k(f"v_mov_b32 v3, {lds_off}")
    k(f"s_cmp_lg_u32 s{s_w}, 0")
    k(f"s_cbranch_scc1 {Ls}")
    k("s_mov_b64 exec, 1")
    k("v_mov_b32 v1, 1")
    k(f"s_lshl_b32 s{s_rank}, s{s_xcc}, 2")
    k(f"v_mov_b32 v2, s{s_rank}")
    k(f"buffer_atomic_add v1, v2, {s(R_DBG,4)}, 0 offen sc0 sc1")
    k("s_waitcnt vmcnt(0)")
    k("ds_write_b32 v3, v1")
    k("s_waitcnt lgkmcnt(0)")
    k("s_mov_b64 exec, -1")
    k(f"{Ls}:")
    k("s_barrier")
    k("ds_read_b32 v1, v3")
    k("s_waitcnt lgkmcnt(0)")
    k(f"v_readfirstlane_b32 s{s_rank}, v1")


def k_rec(prof=None):
    k = Asm()
    k._uid = 2000
    S = RecS(52)
    assert S.end <= 96
    k("s_cmp_ge_u32 s2, 256")
    k("s_cbranch_scc1 Lrc_end")
    load_kernargs(k)
    make_srd(k, R_WS, S_WS, WS_BYTES)
    make_srd(k, R_DBG, S_DBG, 256)
    k("v_lshrrev_b32 v1, 6, v0")
    k(f"v_readfirstlane_b32 s{S.W}, v1")
    get_rank(k, S.SIDE, S.H, S.W)
    k(f"s_cmp_ge_u32 s{S.SIDE}, 2")
    k("s_cbranch_scc1 Lrc_end")
    k(f"s_cmp_ge_u32 s{S.H}, 32")
    k("s_cbranch_scc1 Lrc_end")
    role_rec(k, S, prof=prof)
    k("Lrc_end:")
    k("s_endpgm")
    return k
```

```python
import sys
sys.path.insert(0, 'gen')
from common import *
from role_ln import role_ln
from role_proj import role_proj

HDR = open('cdna_kernels/' + NAME + '.s.ref').read().split('; Override launch')[0]


def wave_id(k, sreg):
    k("v_lshrrev_b32 v1, 6, v0")
    k(f"v_readfirstlane_b32 s{sreg}, v1")


def k_ln():
    k = Asm()
    k("s_cmp_ge_u32 s2, 64")
    k("s_cbranch_scc1 Lln_end")
    load_kernargs(k)
    make_srd(k, R_WS, S_WS, WS_BYTES)
    wave_id(k, 3)
    k("s_lshl_b32 s60, s2, 2")
    k("s_add_u32 s60, s60, s3")
    role_ln(k, 60)
    k("Lln_end:")
    k("s_endpgm")
    return k


def k_proj():
    k = Asm()
    k._uid = 1000
    k("s_cmp_ge_u32 s2, 220")
    k("s_cbranch_scc1 Lpj_end")
    load_kernargs(k)
    make_srd(k, R_WS, S_WS, WS_BYTES)
    wave_id(k, 3)
    k("s_and_b32 s90, s2, 3")
    k("s_lshr_b32 s91, s2, 2")
    k("s_mov_b32 s92, 16")
    k("s_mov_b32 s93, 4")
    role_proj(k, 91, 3, 90, 92, 93)
    k("Lpj_end:")
    k("s_endpgm")
    return k


def build(kernels, path):
    out = [HDR.rstrip('\n')]
    for name, grid, lds, _ in kernels:
        out.append(f"; @launch kernel={name} grid=({grid},1,1) block=(256,1,1) lds={lds}")
    out.append('.amdgcn_target "amdgcn-amd-amdhsa--gfx950"')
    out.append('.text')
    for name, grid, lds, k in kernels:
        out += kernel_header(name)
        out.append(finalize(k.lines))
    out.append('.section .rodata,"a"')
    for name, grid, lds, k in kernels:
        out.append(kernel_desc(name))
    open(path, 'w').write('\n'.join(out))


if __name__ == '__main__':
    ks = [("ln_kernel", 64, 0, k_ln()), ("proj_kernel", 220, 163840, k_proj())]
    try:
        from role_rec import k_rec
        ks.append(("rec_kernel", 256, 163840, k_rec()))
    except ImportError:
        pass
    try:
        from role_att import k_att
        ks.append(k_att())
    except ImportError:
        pass
    try:
        from role_out import k_out
        ks.append(k_out())
    except ImportError:
        pass
    build(ks, sys.argv[1] if len(sys.argv) > 1 else 'v1.s')
```
